```python
import torch

def _softmax(x, axis=-1):
    return torch.softmax(x, dim=axis)
def _gelu(x):
    return torch.nn.functional.gelu(x, approximate="tanh")
def _silu(x):
    return torch.nn.functional.silu(x)
def _sigmoid(x):
    return torch.sigmoid(x)
def _layernorm(x, axis=-1, eps=1e-5):
    m = x.mean(dim=axis, keepdim=True)
    v = x.var(dim=axis, keepdim=True, unbiased=False)
    return (x - m) / torch.sqrt(v + eps)
def _scatter_add(tgt, idx, src, axis=0):
    return tgt.clone().index_add_(axis, idx, src)
def _segment_sum(src, seg, n):
    out = torch.zeros((n,) + src.shape[1:], dtype=src.dtype)
    return out.index_add_(0, seg, src)
def _pad(x, pw):
    flat = tuple(v for pair in reversed(pw) for v in pair)
    return torch.nn.functional.pad(x, flat)

kernel_name = 'standalone__modern_conv_block_replknet__vision'

def setup_inputs():

    _w = (lambda a: (lambda t: t.to(torch.bfloat16) if t.is_floating_point() else t)(torch.as_tensor(a)))
    H = W = 512
    C = 96
    K = 3
    return {
        "x": _w((lambda *s: torch.randn(*s, dtype=torch.bfloat16) * 0.05)(1, H, W, C)),
        "dw_large": _w((lambda *s: torch.randn(*s, dtype=torch.bfloat16) * 0.4)(K, K, C) * (1.0 / K)),
        "dw_small": _w((lambda *s: torch.randn(*s, dtype=torch.bfloat16) * 0.4)(5, 5, C) * 0.2),
        "w1": _w((lambda *s: torch.randn(*s, dtype=torch.bfloat16) * 0.4)(C, 4 * C) * (C ** -0.5)),
        "w2": _w((lambda *s: torch.randn(*s, dtype=torch.bfloat16) * 0.1)(4 * C, C) * ((4 * C) ** -0.5)),
    }

def reference(x, dw_large, dw_small, w1, w2):
    B, H, W, C = x.shape
    Kl = dw_large.shape[0]
    pl = (Kl - 1) // 2
    xpl = _pad(x, ((0,0),(pl,pl),(pl,pl),(0,0)))
    out = torch.zeros_like(x)
    for i in range(Kl):
        for j in range(Kl):
            out = out + xpl[:, i:i+H, j:j+W, :] * dw_large[i, j][None, None, None, :]
    Ks = dw_small.shape[0]
    ps = (Ks - 1) // 2
    xps = _pad(x, ((0,0),(ps,ps),(ps,ps),(0,0)))
    for i in range(Ks):
        for j in range(Ks):
            out = out + xps[:, i:i+H, j:j+W, :] * dw_small[i, j][None, None, None, :]
    h = _layernorm(out, axis=-1)
    h = _gelu(torch.einsum('bhwc,ce->bhwe', h, w1))
    h = torch.einsum('bhwe,ec->bhwc', h, w2)
    return x + h
```

```python
import sys, math
NAME = 'standalone__modern_conv_block_replknet__vision'
L = []
def e(s): L.append('    ' + s)
def lab(s): L.append(s + ':')
def f2u(x):
    import struct
    return struct.unpack('<I', struct.pack('<f', x))[0]

W1OFF = 0
W2OFF = 73728
CWOFF = 147456
LDS = CWOFF + 9600

def srd(d, b, n):
    e(f's_mov_b32 s{d}, s{b}'); e(f's_and_b32 s{d+1}, s{b+1}, 0xffff'); e(f's_mov_b32 s{d+2}, {n}'); e(f's_mov_b32 s{d+3}, 0x00020000')

def body(kname):
    L.append(f'.globl {kname}\n.p2align 8\n.type {kname},@function\n{kname}:')
    e('s_cmp_ge_u32 s2, 256'); e('s_cbranch_scc1 L_end')
    e('s_load_dwordx4 s[4:7], s[0:1], 0')
    e('s_load_dwordx4 s[8:11], s[0:1], 16')
    e('s_load_dwordx4 s[12:15], s[0:1], 32')
    e('s_waitcnt lgkmcnt(0)')
    srd(16, 4, 50331648)
    srd(20, 6, 1728)
    srd(24, 8, 4800)
    srd(28, 10, 73728)
    srd(32, 12, 73728)
    srd(36, 14, 50331648)
    e('v_lshlrev_b32 v1, 4, v0')
    for w, (sr, off) in enumerate([(28, W1OFF), (32, W2OFF)]):
        for i in range(9):
            e(f's_mov_b32 s40, {i*8192}')
            e(f'buffer_load_dwordx4 v[{8+4*i}:{11+4*i}], v1, s[{sr}:{sr+3}], s40 offen')
        e('s_waitcnt vmcnt(0)')
        for i in range(9):
            e(f'v_add_u32 v2, {off + i*8192}, v1')
            e(f'ds_write_b128 v2, v[{8+4*i}:{11+4*i}]')
        e('s_waitcnt lgkmcnt(0)')
    for i in range(5):
        e(f'v_add_u32 v2, {512*i}, v0')
        e('v_lshlrev_b32 v3, 1, v2')
        e('buffer_load_ushort v4, v3, s[24:27], 0 offen')
        e('v_mul_u32_u24 v5, 683, v2'); e('v_lshrrev_b32 v5, 16, v5')
        e('v_mul_u32_u24 v6, 96, v5'); e('v_sub_u32 v6, v2, v6')
        e('v_mul_u32_u24 v7, 52, v5'); e('v_lshrrev_b32 v7, 8, v7')
        e('v_mul_u32_u24 v8, 5, v7'); e('v_sub_u32 v8, v5, v8')
        e('v_subrev_u32 v7, 1, v7'); e('v_subrev_u32 v8, 1, v8')
        e('v_cmp_gt_u32 vcc, 3, v7'); e('v_cmp_gt_u32 s[42:43], 3, v8')
        e('s_nop 2')
        e('s_and_b64 vcc, vcc, s[42:43]')
        e('v_mul_u32_u24 v9, 3, v7'); e('v_add_u32 v9, v9, v8'); e('v_mul_u32_u24 v9, 96, v9'); e('v_add_u32 v9, v9, v6'); e('v_lshlrev_b32 v9, 1, v9')
        e('v_mov_b32 v10, 0x10000')
        e('s_nop 2')
        e('v_cndmask_b32 v9, v10, v9, vcc')
        e('buffer_load_ushort v11, v9, s[20:23], 0 offen')
        e('s_waitcnt vmcnt(0)')
        e('v_lshlrev_b32 v4, 16, v4'); e('v_lshlrev_b32 v11, 16, v11'); e('v_add_f32 v4, v4, v11')
        e('v_lshlrev_b32 v3, 2, v2'); e(f'v_add_u32 v3, {CWOFF}, v3')
        e('v_cmp_gt_u32 vcc, 2400, v2')
        e('s_nop 2')
        e('s_and_saveexec_b64 s[42:43], vcc')
        e('ds_write_b32 v3, v4')
        e('s_mov_b64 exec, s[42:43]')
    e('s_waitcnt lgkmcnt(0)')
    e('s_barrier')
    e('v_lshrrev_b32 v2, 6, v0'); e('s_nop 1'); e('v_readfirstlane_b32 s44, v2')
    e('v_and_b32 v1, 63, v0')
    e('v_and_b32 v2, 31, v1')
    e('v_lshrrev_b32 v3, 5, v1')
    e('s_lshr_b32 s45, s2, 4'); e('s_and_b32 s46, s2, 15')
    e('s_lshl_b32 s45, s45, 5'); e('s_lshl_b32 s46, s46, 5')
    e('s_add_u32 s45, s45, s44')
    e('v_add_u32 v4, s46, v2')
    e('v_and_b32 v5, 15, v1'); e('v_lshrrev_b32 v6, 2, v5'); e('v_and_b32 v5, 3, v5')
    e('v_bfe_u32 v7, v1, 4, 1')
    e('v_lshlrev_b32 v8, 3, v3'); e('v_add_u32 v8, v8, v6'); e('v_mul_u32_u24 v8, 768, v8')
    e('v_lshlrev_b32 v9, 5, v7'); e('v_lshlrev_b32 v10, 3, v5'); e('v_add3_u32 v8, v8, v9, v10')
    e('v_lshlrev_b32 v9, 2, v3'); e('v_add_u32 v9, v9, v6'); e('v_mul_u32_u24 v9, 192, v9')
    e('v_lshlrev_b32 v10, 5, v7'); e('v_add_u32 v9, v9, v10')
    e('v_and_b32 v10, 1, v5'); e('v_lshlrev_b32 v10, 4, v10'); e('v_add_u32 v9, v9, v10')
    e('v_lshrrev_b32 v10, 1, v5'); e('v_lshlrev_b32 v10, 3, v10'); e('v_add_u32 v9, v9, v10')
    e(f'v_add_u32 v9, {W2OFF}, v9')
    e('v_lshlrev_b32 v10, 5, v3'); e(f'v_add_u32 v10, {CWOFF}, v10')
    e('v_lshlrev_b32 v11, 4, v3')
    e('s_mov_b32 s47, 0')
    e('s_mov_b32 s50, 0xffff0000')
    lab('L_tile')
    ACC = 16
    for i in range(48): e(f'v_mov_b32 v{ACC+i}, 0')
    LD = 64
    CW = 88
    XC = 96
    for ti in range(5):
        for tj in range(5):
            e(f's_add_i32 s48, s45, {ti-2}')
            e(f'v_add_u32 v12, {tj-2}, v4' if tj >= 2 else f'v_subrev_u32 v12, {2-tj}, v4')
            e('v_cmp_gt_u32 vcc, 512, v12')
            e('s_cmp_lt_u32 s48, 512'); e('s_cselect_b64 s[42:43], -1, 0')
            e('s_and_b64 vcc, vcc, s[42:43]')
            e('s_mul_i32 s48, s48, 98304')
            e('v_mul_u32_u24 v12, 192, v12'); e('v_add3_u32 v12, v12, s48, v11')
            e('v_mov_b32 v13, 0x7f000000')
            e('s_nop 1')
            e('v_cndmask_b32 v12, v13, v12, vcc')
            dst = XC if (ti, tj) == (2, 2) else LD
            for s in range(6):
                e(f'buffer_load_dwordx4 v[{dst+4*s}:{dst+4*s+3}], v12, s[16:19], 0 offen offset:{32*s}')
            if (ti, tj) == (2, 2): e('v_mov_b32 v14, v12')
            for s in range(6):
                o = (ti*5+tj)*384 + 64*s
                e(f'ds_read_b128 v[{CW}:{CW+3}], v10 offset:{o}')
                e(f'ds_read_b128 v[{CW+4}:{CW+7}], v10 offset:{o+16}')
                e(f's_waitcnt vmcnt({5-s}) lgkmcnt(0)')
                for q in range(4):
                    e(f'v_lshlrev_b32 v13, 16, v{dst+4*s+q}')
                    e(f'v_fmac_f32 v{ACC+8*s+2*q}, v13, v{CW+2*q}')
                    e(f'v_and_b32 v13, s50, v{dst+4*s+q}')
                    e(f'v_fmac_f32 v{ACC+8*s+2*q+1}, v13, v{CW+2*q+1}')
    e(f'v_mov_b32 v12, v{ACC}')
    for i in range(1, 48): e(f'v_add_f32 v12, v12, v{ACC+i}')
    e('v_mov_b32 v13, v12'); e('s_nop 1'); e('v_permlane32_swap_b32 v12, v13'); e('s_nop 1'); e('v_add_f32 v12, v12, v13')
    e(f'v_mul_f32 v12, {hex(f2u(1/96))}, v12')
    for i in range(48): e(f'v_sub_f32 v{ACC+i}, v{ACC+i}, v12')
    e(f'v_mul_f32 v12, v{ACC}, v{ACC}')
    for i in range(1, 48): e(f'v_fmac_f32 v12, v{ACC+i}, v{ACC+i}')
    e('v_mov_b32 v13, v12'); e('s_nop 1'); e('v_permlane32_swap_b32 v12, v13'); e('s_nop 1'); e('v_add_f32 v12, v12, v13')
    e(f'v_mul_f32 v12, {hex(f2u(1/96))}, v12'); e(f'v_add_f32 v12, {hex(f2u(1e-5))}, v12'); e('v_rsq_f32 v12, v12'); e('s_nop 1')
    H = 64
    for i in range(48): e(f'v_mul_f32 v{ACC+i}, v{ACC+i}, v12')
    for i in range(24): e(f'v_cvt_pk_bf16_f32 v{H+i}, v{ACC+2*i}, v{ACC+2*i+1}')
    A2C = 16
    A1C = 120
    FR = 136
    G = 160
    T = 168
    for i in range(48): e(f'v_mov_b32 v{A2C+i}, 0')
    c0 = -2 * math.sqrt(2 / math.pi) * math.log2(math.e); c1 = c0 * 0.044715
    e(f's_mov_b32 s51, {hex(f2u(c0))}'); e(f's_mov_b32 s52, {hex(f2u(c1))}')
    e('v_mov_b32 v15, s51')
    e('v_mov_b32 v12, v8'); e('v_mov_b32 v13, v9')
    e('s_mov_b32 s49, 0')
    lab('L_blk')
    e('v_add_u32 v5, 36864, v12')
    for s in range(6):
        for jj in range(2):
            o = (16*s + 4*jj) * 768
            if o < 36864: e(f'ds_read_b64_tr_b16 v[{FR+4*s+2*jj}:{FR+4*s+2*jj+1}], v12 offset:{o}')
            else: e(f'ds_read_b64_tr_b16 v[{FR+4*s+2*jj}:{FR+4*s+2*jj+1}], v5 offset:{o-36864}')
    e('s_waitcnt lgkmcnt(0)')
    for s in range(6):
        e(f'v_mfma_f32_32x32x16_bf16 v[{A1C}:{A1C+15}], v[{FR+4*s}:{FR+4*s+3}], v[{H+4*s}:{H+4*s+3}], ' + ('0' if s == 0 else f'v[{A1C}:{A1C+15}]'))
    e('s_nop 7')
    for t in range(2):
        for b in range(3):
            for jj in range(2):
                o = (16*t + 8*jj) * 192 + 64*b
                f = FR + 4*(3*t+b) + 2*jj
                e(f'ds_read_b64_tr_b16 v[{f}:{f+1}], v13 offset:{o}')
    e('s_nop 15')
    for r in range(16):
        x = A1C + r
        e(f'v_mul_f32 v{T}, v{x}, v{x}'); e(f'v_fma_f32 v{T}, v{T}, s52, v15'); e(f'v_mul_f32 v{T}, v{T}, v{x}')
        e(f'v_exp_f32 v{T}, v{T}'); e('s_nop 0'); e(f'v_add_f32 v{T}, 1.0, v{T}'); e(f'v_rcp_f32 v{T}, v{T}'); e('s_nop 0'); e(f'v_mul_f32 v{x}, v{x}, v{T}')
    for r in range(8): e(f'v_cvt_pk_bf16_f32 v{G+r}, v{A1C+2*r}, v{A1C+2*r+1}')
    e('s_waitcnt lgkmcnt(0)'); e('s_nop 1')
    for t in range(2):
        for b in range(3):
            f = FR + 4*(3*t+b)
            e(f'v_mfma_f32_32x32x16_bf16 v[{A2C+16*b}:{A2C+16*b+15}], v[{f}:{f+3}], v[{G+4*t}:{G+4*t+3}], v[{A2C+16*b}:{A2C+16*b+15}]')
    e('v_add_u32 v12, 64, v12'); e(f'v_add_u32 v13, {32*192}, v13')
    e('s_nop 7')
    e('s_add_u32 s49, s49, 1'); e('s_cmp_lt_u32 s49, 12'); e('s_cbranch_scc1 L_blk')
    e('s_nop 15')
    for s in range(6):
        for q in range(4):
            a = A2C + 8*s + 2*q
            e(f'v_lshlrev_b32 v12, 16, v{XC+4*s+q}'); e(f'v_add_f32 v{a}, v{a}, v12')
            e(f'v_and_b32 v12, s50, v{XC+4*s+q}'); e(f'v_add_f32 v{a+1}, v{a+1}, v12')
            e(f'v_cvt_pk_bf16_f32 v{H+4*s+q}, v{a}, v{a+1}')
        e(f'buffer_store_dwordx4 v[{H+4*s}:{H+4*s+3}], v14, s[36:39], 0 offen offset:{32*s}')
    e('s_waitcnt vmcnt(0)')
    e('s_add_u32 s45, s45, 8'); e('s_add_u32 s47, s47, 1'); e('s_cmp_lt_u32 s47, 4'); e('s_cbranch_scc1 L_tile')
    lab('L_end')
    e('s_endpgm')

def kd(kname, vg=256):
    return f'''.p2align 6
.amdhsa_kernel {kname}
  .amdhsa_next_free_vgpr {vg}
  .amdhsa_next_free_sgpr 102
  .amdhsa_accum_offset {vg}
  .amdhsa_group_segment_fixed_size 0
  .amdhsa_kernarg_size 64
  .amdhsa_user_sgpr_count 2
  .amdhsa_user_sgpr_kernarg_segment_ptr 1
  .amdhsa_system_sgpr_workgroup_id_x 1
.end_amdhsa_kernel
'''
COPY = '''.globl copy_kernel
.p2align 8
.type copy_kernel,@function
copy_kernel:
    s_load_dwordx2 s[4:5], s[0:1], 0
    s_load_dwordx2 s[6:7], s[0:1], 40
    s_waitcnt lgkmcnt(0)
    s_mov_b32 s8, s4
    s_mov_b32 s9, s5
    s_mov_b32 s10, 50331648
    s_mov_b32 s11, 0x00020000
    s_mov_b32 s12, s6
    s_mov_b32 s13, s7
    s_mov_b32 s14, 50331648
    s_mov_b32 s15, 0x00020000
    s_lshl_b32 s3, s2, 8
    v_add_u32 v1, s3, v0
    v_lshlrev_b32 v1, 4, v1
    buffer_load_dwordx4 v[4:7], v1, s[8:11], 0 offen LDF
    s_waitcnt vmcnt(0)
    buffer_store_dwordx4 v[4:7], v1, s[12:15], 0 offen STF
    s_waitcnt vmcnt(0)
    s_endpgm
'''
if __name__ == '__main__':
    out = sys.argv[1]; mode = sys.argv[2] if len(sys.argv) > 2 else ''
    body(NAME + '_kernel')
    hdr = ''
    if mode == '':
        hdr = f'; @launch grid=(256,1,1) block=(512,1,1) lds={LDS}\n'
    else:
        g = 12288 if mode != 'empty' else 1
        hdr = f'; @launch kernel=copy_kernel grid=({g},1,1) block=(256,1,1) lds=0\n; @launch kernel={NAME}_kernel grid=(256,1,1) block=(512,1,1) lds={LDS}\n'
    txt = hdr + '.amdgcn_target "amdgcn-amd-amdhsa--gfx950"\n.text\n' + '\n'.join(L) + '\n'
    if mode: txt += COPY.replace('LDF', 'nt' if 'nt' in mode else '').replace('STF', 'nt' if mode == 'ntnt' else '')
    txt += '.section .rodata,"a"\n' + kd(NAME + '_kernel')
    if mode: txt += kd('copy_kernel', 16)
    open(out, 'w').write(txt)
```

```python
import re

TRANS = ('v_exp_', 'v_rcp_', 'v_rsq_', 'v_log_', 'v_sqrt_', 'v_sin_', 'v_cos_')

def regs_of(tok):
    tok = tok.strip()
    tok = tok.lstrip('-').replace('|', '')
    m = re.fullmatch(r'abs\((.*)\)', tok)
    if m: tok = m.group(1)
    m = re.fullmatch(r'([vas])\[(\d+):(\d+)\]', tok)
    if m: return [f'{m.group(1)}{i}' for i in range(int(m.group(2)), int(m.group(3)) + 1)]
    m = re.fullmatch(r'([vas])(\d+)', tok)
    if m: return [tok]
    if tok in ('vcc', 'exec', 'm0', 'scc'): return [tok]
    if tok in ('vcc_lo', 'vcc_hi'): return ['vcc']
    if tok in ('exec_lo', 'exec_hi'): return ['exec']
    return []

class I:
    _n = 0
    def __init__(s, text, t=None, after=(), done=(), tag='', comm=False):
        s.comm = comm
        s.text = text; s.t = t; s.after = list(after); s.done = list(done); s.tag = tag
        I._n += 1; s.id = I._n
        parts = text.split(None, 1)
        op = s.op = parts[0]
        rest = parts[1] if len(parts) > 1 else ''
        ops = []; depth = 0; cur = ''
        for ch in rest:
            if ch in '[(': depth += 1
            if ch in '])': depth -= 1
            if ch == ',' and depth == 0: ops.append(cur.strip()); cur = ''
            else: cur += ch
        if cur.strip(): ops.append(cur.strip())
        mods = ''
        if ops:
            last = ops[-1].split(None, 1)
            ops[-1] = last[0]
            mods = last[1] if len(last) > 1 else ''
        R = [regs_of(o) for o in ops]
        rd = []; wr = []
        s.passes = 0; s.sdwa_dst = False; s.cregs = []; s.kind = None
        if op.startswith('v_mfma') or op.startswith('v_smfmac'):
            s.kind = 'mfma'
            wr = R[0]
            if op.startswith('v_smfmac'):
                s.cregs = R[0]; s.abregs = R[1] + R[2] + R[3]
            else:
                s.cregs = R[3]; s.abregs = R[1] + R[2]
            rd = s.cregs + s.abregs
            s.passes = 8 if '32x32' in op else 4
            nab = len(R[1]) + len(R[2])
            s.cost = 4 if nab <= 4 else (8 if nab <= 8 else 12)
            s.pipe = s.passes * 4
        elif op.startswith('v_'):
            s.kind = 'trans' if op.startswith(TRANS) else 'valu'
            s.cost = 8 if (s.kind == 'trans' or 'permlane' in op or 'mixlo' in op or 'mixhi' in op) else 4
            if op.startswith('v_cmp'):
                wr = R[0]; rd = sum(R[1:], [])
            elif 'permlane' in op and 'swap' in op:
                wr = R[0] + R[1]; rd = R[0] + R[1]
            elif op.startswith(('v_add_co', 'v_sub_co', 'v_addc_co', 'v_subb_co')):
                wr = R[0] + R[1]; rd = sum(R[2:], [])
            else:
                wr = R[0]; rd = sum(R[1:], [])
                if op.startswith(('v_fmac', 'v_dot2c')) or 'UNUSED_PRESERVE' in mods or 'mixlo' in op or 'mixhi' in op or op.startswith('v_writelane'):
                    rd = rd + R[0]
            if 'dst_sel:WORD' in mods or 'dst_sel:BYTE' in mods: s.sdwa_dst = True
            rd = rd + ['exec']
        elif op.startswith('ds_'):
            if op.startswith('ds_read') or op.startswith('ds_bpermute') or '_rtn' in op:
                s.kind = 'dsr'; wr = R[0]; rd = sum(R[1:], []); s.cost = 4
            else:
                s.kind = 'dsw'; rd = sum(R, []); s.cost = 4 * len(rd)
            rd = rd + ['exec']
        elif op.startswith('buffer_'):
            if 'lds' in mods.split():
                s.kind = 'vld'; rd = sum(R, []) + ['m0']; s.cost = 4
            elif op.startswith('buffer_load'):
                s.kind = 'vld'; wr = R[0]; rd = sum(R[1:], []); s.cost = 4
            else:
                s.kind = 'vst'; rd = sum(R, []); s.data = R[0]; s.cost = 4
            rd = rd + ['exec']
        elif op == 's_barrier': s.kind = 'bar'; s.cost = 4
        elif op == 's_waitcnt': s.kind = 'wait'; s.cost = 4
        elif op == 's_nop': s.kind = 'nop'; s.cost = 4 * (int(ops[0]) + 1)
        elif op.startswith('s_load'): s.kind = 'smem'; wr = R[0]; rd = R[1]; s.cost = 4
        elif op.endswith(':'): s.kind = 'label'; s.cost = 0
        elif op.startswith('s_'):
            s.kind = 'salu'; s.cost = 4
            if op.startswith('s_cmp') or op.startswith('s_bitcmp'): wr = ['scc']; rd = sum(R, [])
            elif op.startswith('s_cbranch_scc'): rd = ['scc']
            elif op.startswith('s_cbranch_vcc'): rd = ['vcc']
            elif op.startswith(('s_branch', 's_endpgm', 's_setprio', 's_cbranch', 's_sleep')): pass
            else:
                wr = R[0]; rd = sum(R[1:], [])
                if op.startswith(('s_cselect', 's_addc', 's_subb')): rd = rd + ['scc']
                if 'saveexec' in op: wr = wr + ['exec']; rd = rd + ['exec']
                if not op.startswith(('s_mov', 's_cselect', 's_mul', 's_getreg')): wr = wr + ['scc']
        else:
            raise ValueError('unknown op ' + text)
        s.rd = set(rd); s.wr = set(wr)
    def states(s):
        if s.kind == 'label': return 0
        if s.kind == 'nop': return int(s.text.split()[1]) + 1
        return 1
    def __repr__(s): return s.text

VAL = ('valu', 'trans')
def need_states(p, c):
    n = 0
    if p.kind in VAL:
        vw = {r for r in p.wr if r[0] in 'va' and r != 'vcc'}
        sw = {r for r in p.wr if r[0] == 's' or r == 'vcc'}
        if c.kind == 'mfma' and vw & c.rd: n = max(n, 2)
        if c.kind in VAL:
            if 'permlane' in c.op and vw & c.rd: n = max(n, 2)
            if 'dpp' in c.text and vw & c.rd: n = max(n, 2)
            if c.op.startswith(('v_readlane', 'v_readfirstlane')) and vw & c.rd: n = max(n, 1)
            if p.kind == 'trans' and vw & c.rd: n = max(n, 1)
            if p.sdwa_dst and vw & (c.rd | c.wr): n = max(n, 1)
            if sw & c.rd: n = max(n, 2)
        if c.kind in ('dsr', 'dsw', 'vld', 'vst'):
            if sw & c.rd: n = max(n, 5)
            if (p.kind == 'trans' or p.sdwa_dst) and vw & c.rd: n = max(n, 1)
        if c.kind == 'salu' and sw & c.rd: n = max(n, 2)
    if p.kind == 'mfma':
        big = 12 if p.passes == 8 else 8
        if c.kind == 'mfma':
            if p.wr & set(c.abregs): n = max(n, big)
            if p.wr & set(c.cregs):
                if not (set(c.cregs) == p.wr and c.op == p.op): n = max(n, 10 if p.passes == 8 else 6)
            elif p.wr & c.wr and c.passes != p.passes: n = max(n, big)
        elif p.wr & (c.rd | c.wr): n = max(n, big)
        if c.kind in VAL and set(p.cregs) & c.wr: n = max(n, 7 if p.passes == 8 else 3)
    if p.kind == 'vst' and len(p.data) >= 3 and set(p.data) & c.wr: n = max(n, 2)
    if p.kind == 'salu' and 'm0' in p.wr and 'm0' in c.rd and c.kind != 'salu': n = max(n, 1)
    return n

def missing_states(hist, c):
    dist = 0; worst = 0
    for p in reversed(hist):
        if dist >= 12: break
        worst = max(worst, need_states(p, c) - dist)
        dist += p.states()
    return worst

def build_deps(ins):
    lastw = {}; readers = {}; commw = {}
    for x in ins:
        x.deps = set(); x.raw = set()
        cr = set(x.cregs) if x.comm else set()
        for r in x.rd | x.wr:
            if r in lastw: x.deps.add(lastw[r]); x.raw.add(lastw[r])
            if r not in cr:
                for y in commw.get(r, ()): x.deps.add(y); x.raw.add(y)
        for r in x.wr:
            for y in readers.get(r, ()):
                if y is not x: x.deps.add(y)
        for y in x.after: x.deps.add(y)
        for y in x.done: x.deps.add(y); x.raw.add(y)
        for r in x.rd - cr: readers.setdefault(r, []).append(x)
        for r in x.wr:
            if r in cr: commw.setdefault(r, []).append(x)
            else: lastw[r] = x; readers[r] = []; commw[r] = []
    S = set(ins)
    for x in ins:
        x.deps &= S; x.raw &= S

MEMK = ('dsr', 'dsw', 'vld', 'vst')
def schedule(ins, LDSLAT=230, look=0.6, maxds=3, verbose=False):
    build_deps(ins)
    for x in reversed(ins):
        for d in x.deps:
            if d.t > x.t: d.t = x.t
    pend = sorted(ins, key=lambda x: (x.t, x.id))
    emitted = {}; out = []; now = 0; pipe_free = 0
    def ready(x, strict=True):
        for d in x.deps:
            if d not in emitted: return False
        if strict:
            for d in x.raw:
                if d.kind in ('dsr', 'dsw') and now - emitted[d] < LDSLAT: return False
            if missing_states(out, x) > 0: return False
        return True
    def emit(x):
        nonlocal now, pipe_free
        if x.kind == 'mfma':
            if now < pipe_free: now = pipe_free
            pipe_free = now + x.pipe
        c = x.cost
        if x.kind in MEMK and out and out[-1].kind in VAL: c += 8
        emitted[x] = now; out.append(x); pend.remove(x); now += c
    def nextm():
        for x in pend:
            if x.kind == 'mfma': return x
        return None
    while pend:
        ms = [x for x in pend if x.kind == 'mfma']
        tn = ms[0].t if ms else 1e9
        last = out[-1].kind if out else 'mfma'
        nds = 0
        for y in reversed(out):
            if y.kind in MEMK: nds += 1
            elif y.kind in ('salu', 'bar'): continue
            else: break
        inhead = True
        for y in reversed(out):
            if y.kind in VAL: inhead = False; break
            if y.kind == 'mfma': break
        cand = None
        under = now < pipe_free - 0
        if inhead:
            for x in pend:
                if x.t > tn + (look * 0.3): break
                if x.kind in ('salu', 'bar') and x.t <= tn and ready(x): cand = x; break
                if x.kind in MEMK and ready(x) and (nds < maxds or x.t < tn - 0.15) and (x.t <= tn or nds < 1): cand = x; break
        if cand is None:
            for x in pend:
                if x.t > tn and not (under and x.t <= tn + look): break
                if x.kind in VAL and ready(x): cand = x; break
        if cand is None:
            for x in ms[:4]:
                if x.t <= tn + 0.3 and ready(x): cand = x; break
        if cand is None:
            for x in pend:
                if x.t > tn + 2 * look: break
                if ready(x): cand = x; break
        if cand is None:
            for x in pend:
                if ready(x, False): cand = x; break
            if verbose: print('forced', cand, 'at', now)
        emit(cand)
    if verbose: print('sched est cycles', now)
    return out

def fix_waits(seq, loop=False, LSAFE=200):
    seq = list(seq)
    for it in range(10):
        changed = False
        lg = []; vm = []
        hist = []; now = 0
        for rep in range(2 if loop else 1):
            new = []
            i = 0
            while i < len(seq):
                x = seq[i]
                def needs(y):
                    a = -1; b = -1
                    for k, (o, _) in enumerate(lg):
                        if o.wr & (y.rd | y.wr) or o in y.done: a = k
                    for k, (o, _) in enumerate(vm):
                        if o.wr & (y.rd | y.wr) or o in y.done: b = k
                    return a, b
                if x.kind == 'wait':
                    m = re.search(r'lgkmcnt\((\d+)\)', x.text)
                    if m: n = int(m.group(1)); lg = lg[len(lg) - n:] if n < len(lg) else lg; lg = lg if n else []
                    m = re.search(r'vmcnt\((\d+)\)', x.text)
                    if m: n = int(m.group(1)); vm = vm[len(vm) - n:] if n < len(vm) else vm; vm = vm if n else []
                else:
                    a, b = needs(x)
                    if new and new[-1].kind == 'mfma' and x.kind != 'label':
                        j = i
                        while j < len(seq):
                            y = seq[j]
                            if y.kind in ('wait', 'label'): break
                            a2, b2 = needs(y)
                            if a2 >= 0 and now - lg[a2][1] >= LSAFE * 0.6: a = max(a, a2)
                            b = max(b, b2)
                            if y.kind == 'mfma': break
                            j += 1
                    if a >= 0 or b >= 0:
                        parts = []
                        if b >= 0:
                            n = len(vm) - 1 - b; parts.append(f'vmcnt({min(n, 63)})'); vm = vm[b + 1:]
                        if a >= 0:
                            if any(o.kind == 'smem' for o, _ in lg): a = len(lg) - 1
                            while a + 1 < len(lg) and now - lg[a + 1][1] >= LSAFE: a += 1
                            n = len(lg) - 1 - a
                            if n > 15: n = 15; a = len(lg) - 1 - 15
                            parts.append(f'lgkmcnt({n})'); lg = lg[a + 1:]
                        w = I('s_waitcnt ' + ' '.join(parts))
                        new.append(w); hist.append(w); now += 4; changed = True
                    k = missing_states(hist, x)
                    if k > 0:
                        w = I(f's_nop {k - 1}'); new.append(w); hist.append(w); now += 4 * k; changed = True
                    if x.kind in ('dsr', 'dsw', 'smem'): lg.append((x, now))
                    if x.kind in ('vld', 'vst'): vm.append((x, now))
                new.append(x); hist.append(x); now += x.cost
                i += 1
            seq = new
        if not changed: return seq
    raise RuntimeError('fix_waits did not converge')

def estimate(seq):
    now = 0; pf = 0; issue = 0
    prev = None
    for x in seq:
        if x.kind == 'mfma':
            if now < pf: now = pf
            pf = now + x.pipe
        c = x.cost
        if x.kind in MEMK and prev is not None and prev.kind in VAL: c += 8
        if x.kind == 'bar': c += 50
        now += c; issue += c; prev = x
    return now, issue
```

```python
import sys, math, struct, argparse
from asmlib import *
NAME = 'standalone__modern_conv_block_replknet__vision'
def f2u(x): return struct.unpack('<I', struct.pack('<f', x))[0]

class Cfg:
    CP = (3, 7)
    NB = 24
    LDF = 'nt'
    STF = ''
    dbg = ''
    LDSLAT = 230; look = 0.6; maxds = 3; LSAFE = 200
    nsteps = 8
cfg = Cfg()

LUTP = 0; ATAB = 6144; REG = 36864; RSTR = 7168; LUTN = 65536
RBASE = 71680; B0 = 256; RS = 4064; WP = 18 * RS + 64
WLDS = RBASE + B0 + 18 * RS
LDSSZ = 163840
W1S = 71680; W2S = [6144, 6144 + 18432, 6144 + 2 * 18432, 145408]
OOB = 0x28000
ACC2 = 0; ACC1 = 48; H = 96; D = 120; STG = 168; CB = 200; CA = 212; WB = 218; GT = 226; ID = 230; ZZ = 234
ST = 236; IDX = 240; IDXC = 241; aB = 242; aA = 245; aX = 247; aOwn = 248; aSend = 249; aL16 = 250; aW = 251; aHW = 252; aRW = 253; vLD0 = 254; vST = 255
TMP = 216
sX = 16; sO = 20; sDL = 24; sDS = 28; sW1 = 32; sW2 = 36
sWv = 40; sY0 = 41; sX0 = 42; sCnt = 43; sSt = 44; sRW = 45; sLY = 46; sXo = 47; sK = 48; sC = 49; sA = 50; s96 = 51; sEps = 52; sKi = 53; sLim = 54
sT = 56
A16 = 0.46875
KEXP = 110

def v(a, n=1): return f'v{a}' if n == 1 else f'v[{a}:{a+n-1}]'
def ar(a, n=1): return f'a{a}' if n == 1 else f'a[{a}:{a+n-1}]'
def s(a, n=1): return f's{a}' if n == 1 else f's[{a}:{a+n-1}]'

LFR = [('g2', b, 1, 2) for b in range(6)] + [('g2', 1, 0, 2), ('g2', 4, 0, 2)]
ALLF = [('g1', b, k) for b in range(6) for k in range(6)] + [('g2', b, t, ob) for b in range(6) for t in range(2) for ob in range(3)]
AFR = [f for f in ALLF if f not in LFR]
assert len(AFR) == 64
def areg(f): return 4 * AFR.index(f)

SD0 = 'dst_sel:WORD_0 dst_unused:UNUSED_PRESERVE src0_sel:WORD_0'
SD1 = 'dst_sel:WORD_1 dst_unused:UNUSED_PRESERVE src0_sel:WORD_1'

def g1(u, t0):
    b = u % 6; a = ACC1 + 16 * (u % 3)
    return [I(f'v_mfma_f32_32x32x16_bf16 {v(a,16)}, {ar(areg(("g1",b,k)),4)}, {v(H+4*k,4)}, ' + ('0' if k == 0 else v(a, 16)), t0 + k / 12) for k in range(6)]

wbsel = [0]
def g2(u, t0, obmajor):
    b = u % 6; a = ACC1 + 16 * (u % 3); L = []
    order = [(t, ob) for ob in range(3) for t in range(2)] if obmajor else [(t, ob) for t in range(2) for ob in range(3)]
    for i, (t, ob) in enumerate(order):
        f = ('g2', b, t, ob); tt = t0 + i / 12
        if f in LFR:
            wb = WB + 4 * wbsel[0]; wbsel[0] ^= 1
            L.append(I(f'ds_read_b128 {v(wb,4)}, {v(aW)} offset:{1024*LFR.index(f)}', tt - 0.6))
            A = v(wb, 4)
        else: A = ar(areg(f), 4)
        L.append(I(f'v_smfmac_f32_32x32x32_bf16 {v(ACC2+16*ob,16)}, {A}, {v(a+8*t,8)}, {v(IDX)}', tt, comm=True))
    return L

def elem(u, t0, span=1.0):
    a = ACC1 + 16 * (u % 3); L = []
    lut = [r for r in range(16) if (r // 2) not in cfg.CP]
    n = len(lut)
    for i, r in enumerate(lut):
        tt = t0 + span * i / max(n, 1)
        L.append(I(f'v_lshlrev_b32_sdwa {v(a+r)}, 1, {v(a+r)} dst_sel:DWORD dst_unused:UNUSED_PAD src0_sel:DWORD src1_sel:WORD_1', tt - 0.09))
        L.append(I(f'ds_read_u16 {v(a+r)}, {v(a+r)} offset:{LUTP}', tt))
    cp = list(cfg.CP); C = []
    for i in range(0, len(cp), 2):
        grp = cp[i:i + 2]
        X = lambda j: v(GT + j); T = lambda j: v(GT + 2 + j)
        st = [lambda j, p: f'v_cvt_pk_f16_f32 {X(j)}, {v(a+2*p)}, {v(a+2*p+1)}',
              lambda j, p: f'v_pk_fma_f16 {T(j)}, {X(j)}, {X(j)}, {s(sC)}',
              lambda j, p: f'v_pk_mul_f16 {T(j)}, {X(j)}, {T(j)} neg_lo:[1,0] neg_hi:[1,0]',
              lambda j, p: f'v_exp_f16_sdwa {T(j)}, {T(j)} {SD0}',
              lambda j, p: f'v_exp_f16_sdwa {T(j)}, {T(j)} {SD1}',
              lambda j, p: f'v_pk_fma_f16 {T(j)}, {T(j)}, {s(sA)}, {s(sA)}',
              lambda j, p: f'v_rcp_f16_sdwa {T(j)}, {T(j)} {SD0}',
              lambda j, p: f'v_rcp_f16_sdwa {T(j)}, {T(j)} {SD1}',
              lambda j, p: f'v_fma_mix_f32 {v(a+2*p)}, {v(a+2*p)}, {T(j)}, 0 op_sel:[0,0,0] op_sel_hi:[0,1,0]',
              lambda j, p: f'v_fma_mix_f32 {v(a+2*p+1)}, {v(a+2*p+1)}, {T(j)}, 0 op_sel:[0,1,0] op_sel_hi:[0,1,0]',
              lambda j, p: f'v_cvt_pk_bf16_f32 {v(a+2*p)}, {v(a+2*p)}, {v(a+2*p+1)}']
        for f in st:
            for j, p in enumerate(grp): C.append(f(j, p))
    for i, x in enumerate(C): L.append(I(x, t0 + span * i / len(C)))
    return L

def zero16(r, t): return I(f'v_mfma_f32_32x32x8_bf16 {v(r,16)}, {v(ZZ,2)}, {v(ZZ,2)}, 0', t)

def pack_acc2(t0, sink):
    L = []; outs = []
    for ob in range(3):
        r = ACC2 + 16 * ob; tt = t0 + ob * 0.15
        for i in range(8): L.append(I(f'v_cvt_pk_bf16_f32 {v(r+i)}, {v(r+2*i)}, {v(r+2*i+1)}', tt + i * 0.01))
        for q in range(2):
            x = sink(2 * ob + q, r + 4 * q, tt + 0.1); L.append(x); outs.append(x)
        L.append(zero16(r, tt + 0.2))
    return L, outs

def conv(t0, t1, bufs, after=()):
    L = []; rds = []; dt = (t1 - t0) / 12
    for i in range(3): L.append(zero16(D + 16 * i, t0 - 0.02 + i * 4 * dt))
    for p in range(12):
        cb, ca = bufs[p % len(bufs)]; tt = t0 + p * dt
        off = (p // 4) * 336 + (p % 4) * 80
        R = [I(f'ds_read_b128 {v(cb+4*q,4)}, {v(aB+q)} offset:{off}', tt + q * dt * 0.12, after=after) for q in range(3)]
        R += [I(f'ds_read_b128 {v(ca,4)}, {v(aA)} offset:{640*p}', tt + dt * 0.36), I(f'ds_read_b64 {v(ca+4,2)}, {v(aA+1)} offset:{640*p}', tt + dt * 0.48)]
        L += R; rds += R[:3]
        d = D + 4 * p; tm = tt + dt * (len(bufs) - 0.05)
        L.append(I(f'v_smfmac_f32_16x16x64_bf16 {v(d,4)}, {v(ca,4)}, {v(cb,8)}, {v(IDXC)}', tm - 0.1))
        L.append(I(f'v_smfmac_f32_16x16x32_bf16 {v(d,4)}, {v(ca+4,2)}, {v(cb+8,4)}, {v(IDXC)}', tm))
        V = []
        for oy in range(2):
            a, b = v(d + 2 * oy), v(d + 2 * oy + 1); S, Q = v(ST + oy), v(ST + 2 + oy)
            if p == 0: V.append([f'v_add_f32 {S}, {a}, {b}', f'v_mul_f32 {Q}, {a}, {a}', f'v_fmac_f32 {Q}, {b}, {b}'])
            else: V.append([f'v_add_f32 {S}, {S}, {a}', f'v_fmac_f32 {Q}, {a}, {a}', f'v_add_f32 {S}, {S}, {b}', f'v_fmac_f32 {Q}, {b}, {b}'])
        V = [x for pr in zip(*V) for x in pr]
        for i, x in enumerate(V): L.append(I(x, tm + 0.15 + dt * i / len(V)))
    return L, rds

def stats_write(t): return I(f'ds_write_b128 {v(aOwn)}, {v(ST,4)} offset:6144', t)

def normalize(t0, t1, tb, bar_stats, bar_h):
    L = []
    R = [I(f'ds_read_b128 {v(tb+4*w,4)}, {v(aL16)} offset:{REG+RSTR*w+6144}', t0 + 0.02 * w, after=[bar_stats]) for w in range(4)]
    L += R; V = []
    for i in range(4): V.append(f'v_add_f32 {v(tb+i)}, {v(tb+i)}, {v(tb+4+i)}')
    for i in range(4): V.append(f'v_add_f32 {v(tb+8+i)}, {v(tb+8+i)}, {v(tb+12+i)}')
    for i in range(4): V.append(f'v_add_f32 {v(ST+i)}, {v(tb+i)}, {v(tb+8+i)}')
    for oy in range(2): V.append(f'v_mul_f32 {v(ST+oy)}, {s(s96)}, {v(ST+oy)}')
    for oy in range(2): V.append(f'v_mul_f32 {v(ST+2+oy)}, {s(s96)}, {v(ST+2+oy)}')
    for oy in range(2): V.append(f'v_fma_f32 {v(ST+2+oy)}, -{v(ST+oy)}, {v(ST+oy)}, {v(ST+2+oy)}')
    for oy in range(2): V.append(f'v_max_f32 {v(ST+2+oy)}, 0, {v(ST+2+oy)}')
    for oy in range(2): V.append(f'v_add_f32 {v(ST+2+oy)}, {s(sEps)}, {v(ST+2+oy)}')
    for oy in range(2): V.append(f'v_rsq_f32 {v(ST+2+oy)}, {v(ST+2+oy)}')
    for oy in range(2): V.append(f'v_mul_f32 {v(ST+2+oy)}, {s(sK)}, {v(ST+2+oy)}')
    for oy in range(2): V.append(f'v_mul_f32_e64 {v(ST+oy)}, -{v(ST+oy)}, {v(ST+2+oy)}')
    W = []
    for c in range(3):
        r = D + 16 * c
        for (dst, src) in [(0, 0), (1, 4), (4, 2), (5, 6), (2, 8), (3, 12), (6, 10), (7, 14)]:
            oy = (src >> 1) & 1
            V.append(f'v_fma_f32 {v(r+src)}, {v(r+src)}, {v(ST+2+oy)}, {v(ST+oy)}')
            V.append(f'v_fma_f32 {v(r+src+1)}, {v(r+src+1)}, {v(ST+2+oy)}, {v(ST+oy)}')
            V.append(f'v_cvt_pk_bf16_f32 {v(r+dst)}, {v(r+src)}, {v(r+src+1)}')
        for oy in range(2): V.append(('w', f'ds_write_b128 {v(aHW)}, {v(r+4*oy,4)} offset:{512*c+RSTR*oy}'))
    ts = t0 + 0.4
    for i, x in enumerate(V):
        tt = ts + (t1 - ts) * i / len(V)
        if isinstance(x, tuple):
            y = I(x[1], tt, after=[bar_h]); W.append(y); L.append(y)
        else: L.append(I(x, tt))
    return L, R, W

def ring_write(t0, t1, src, nrows, tmp, after=()):
    L = []; W = []; n = 8 * nrows; k = 0
    for r in range(nrows):
        tt = t0 + (t1 - t0) * k / n
        L.append(I(f'v_add_u32 {v(tmp)}, {s(sRW)}, {v(aRW)}' if r == 0 else f'v_add_u32 {v(tmp)}, {RS}, {v(tmp)}', tt - 0.1))
        for i in range(4):
            for j in (0, 2):
                q = src + 16 * r + 4 * i + j
                x = I(f'ds_write2_b32 {v(tmp)}, {v(q)}, {v(q+1)} offset0:{5*i+20*j} offset1:{5*i+20*j+20}', t0 + (t1 - t0) * k / n, after=after)
                L.append(x); W.append(x); k += 1
    return L, W

def load_row(dst, t):
    L = [I(f'buffer_load_dwordx4 {v(dst,4)}, {v(vLD0)}, {s(sX,4)}, 0 offen {cfg.LDF}', t)]
    for i in range(1, 4):
        L.append(I(f'buffer_load_dwordx4 {v(dst+4*i,4)}, {v(aL16)}, {s(sX,4)}, {s(sXo)} offen offset:{960*(i-1)} {cfg.LDF}', t + 0.04 * i))
    return L
def adv_x(nrows, t):
    return [I(f's_add_u32 {s(sX)}, {s(sX)}, {98304*nrows}', t), I(f's_addc_u32 {s(sX+1)}, {s(sX+1)}, 0', t)]
def load_group(t0):
    L = [I(f's_cmp_lt_u32 {s(sLY)}, {s(sLim)}', t0 - 0.1), I(f's_cselect_b32 {s(sX+2)}, 98304, 0', t0 - 0.1)]
    L += load_row(STG, t0) + adv_x(1, t0 + 0.2) + load_row(STG + 16, t0 + 0.25) + adv_x(7, t0 + 0.45)
    L.append(I(f's_add_u32 {s(sLY)}, {s(sLY)}, 8', t0 + 0.46))
    return L
def adv_ring_s(t):
    return [I(f's_add_u32 {s(sRW)}, {s(sRW)}, {8*RS}', t), I(f's_sub_u32 {s(sT)}, {s(sRW)}, {WP}', t), I(f's_min_u32 {s(sRW)}, {s(sRW)}, {s(sT)}', t)]
def adv_ring_v(r, tmp, t):
    c1 = (8 * RS - RBASE) & 0xffffffff
    return [I(f'v_add_u32 {v(r)}, {hex(c1)}, {v(r)}', t), I(f'v_subrev_u32 {v(tmp)}, {WP}, {v(r)}', t + 0.02),
            I(f'v_min_u32 {v(r)}, {v(r)}, {v(tmp)}', t + 0.04), I(f'v_add_u32 {v(r)}, {RBASE}, {v(r)}', t + 0.06)]

def idadd(ob, buf, t): return I(f'v_smfmac_f32_32x32x32_bf16 {v(ACC2+16*ob,16)}, {v(ID,4)}, {v(buf,8)}, {v(IDX)} abid:1', t, comm=True)
def hread(addr, t0, after=()):
    return [I(f'ds_read_b128 {v(H+4*k,4)}, {v(addr)} offset:{1024*k}', t0 + k / 12 + 0.01, after=after) for k in range(6)]
def store_sink(k6, r, t): return I(f'buffer_store_dwordx4 {v(r,4)}, {v(vST)}, {s(sO,4)}, {s(sSt)} offen offset:{32*k6} {cfg.STF}', t)

def epilogue(t0):
    L, outs = pack_acc2(t0, store_sink)
    L.append(I(f's_mov_b32 {s(sO+2)}, 50331648', t0 + 0.6))
    L.append(I(f's_add_u32 {s(sSt)}, {s(sSt)}, {8*98304}', t0 + 0.6))
    return L

def loop_body(with_conv=True):
    wbsel[0] = 0
    L = []
    TBS, TB3, TB4, TB0 = 7.3, 8.6, 9.55, 10.98
    cv, cvr = conv(0.05, 6.5, [(CB, CA)])
    L += cv
    sw = stats_write(TBS - 0.3); L.append(sw)
    bs = I('s_barrier', TBS, done=[sw] + cvr); L.append(bs)
    b4 = I('s_barrier', TB4)
    nl, nr, hw = normalize(TBS + 0.02, TB0 - 0.4, CB, bs, b4)
    nhead = [x for x in nl if x not in hw]
    for u in range(12):
        L += g1(u, u)
        if u == 5: hown = hread(aOwn, u); L += hown
        if u == 11:
            b0 = I('s_barrier', TB0, done=hw + rw); L.append(b0)
            L += hread(aSend, u, after=[b0])
            L += load_group(11.1)
        L += elem((u - 1) % 12, u + 0.04, 0.94)
        if u == 2: L += epilogue(1.85)
        if u == 8:
            L += nhead
            pl, hops = pack_acc2(7.85, lambda k6, r, t: I(f'ds_write_b128 {v(aOwn)}, {v(r,4)} offset:{1024*k6}', t, after=hown + [bs]))
            L += pl
            for q in range(3): L += adv_ring_v(aB + q, TMP, 6.7 + 0.2 * q)
            xr = []
            for ob in range(3):
                buf = CB + 8 * (ob % 2); tt = 7.85 + 0.2 * ob
                base = aX
                if ob: L.append(I(f'v_add_u32 {v(TMP+1)}, {1344*ob}, {v(aX)}', tt - 0.1)); base = TMP + 1
                for q in range(2):
                    for jj in range(2):
                        x = I(f'ds_read2_b32 {v(buf+4*q+2*jj,2)}, {v(base)} offset0:{168*q+40*jj} offset1:{168*q+40*jj+20}', tt + 0.03 * (2 * q + jj)); L.append(x); xr.append(x)
                L.append(idadd(ob, buf, tt + 0.45))
            L += adv_ring_v(aX, TMP, 8.5)
            b3 = I('s_barrier', TB3, done=hops, after=[bs]); L.append(b3)
            hr = []
            for ob in range(3):
                buf = CB + 8 * ((ob + 1) % 2); tt = TB3 + 0.05 + 0.25 * ob
                for q in range(2):
                    x = I(f'ds_read_b128 {v(buf+4*q,4)}, {v(aSend)} offset:{1024*(2*ob+q)}', tt, after=[b3]); L.append(x); hr.append(x)
                L.append(idadd(ob, buf, tt + 0.45))
            b4.done = hr + xr; L.append(b4)
            for i, x in enumerate(hw): x.t = max(x.t, TB4 + 0.05 + 0.1 * i)
            L += hw
            rl, rw = ring_write(TB4 + 0.05, TB0 - 0.4, STG, 2, TMP, after=[b4]); L += rl
            L += adv_ring_s(TB0 - 0.2)
        L += g2((u - 2) % 12, u + 0.5, obmajor=(u in (1, 7)))
    return L

def drain():
    wbsel[0] = 0
    L = []
    L += elem(11, 0.0, 0.6)
    L += g2(10, 0.3, False)
    L += g2(11, 1.0, True)
    L += [x for x in epilogue(1.3) if x.kind != 'mfma' and x.kind != 'salu']
    return L

def srd(d, b, n):
    return [f's_mov_b32 {s(d)}, {s(b)}', f's_and_b32 {s(d+1)}, {s(b+1)}, 0xffff', f's_mov_b32 {s(d+2)}, {n}', f's_mov_b32 {s(d+3)}, 0x00020000']

def prologue():
    P = []
    def e(x): P.append(I(x))
    LN = 1
    e('s_cmp_ge_u32 s2, 256'); e('s_cbranch_scc1 L_end')
    e('s_load_dwordx4 s[4:7], s[0:1], 0'); e('s_load_dwordx4 s[8:11], s[0:1], 16'); e('s_load_dwordx4 s[12:15], s[0:1], 32')
    if cfg.dbg: e('s_load_dwordx2 s[70:71], s[0:1], 56')
    e('v_lshrrev_b32 v2, 6, v0'); e('v_and_b32 v1, 63, v0'); e(f'v_readfirstlane_b32 {s(sWv)}, v2')
    e(f'v_lshlrev_b32 {v(aL16)}, 4, v1')
    e(f's_and_b32 {s(sY0)}, s2, 7'); e(f's_lshl_b32 {s(sY0)}, {s(sY0)}, 6')
    e(f's_lshr_b32 {s(sX0)}, s2, 3'); e(f's_lshl_b32 {s(sX0)}, {s(sX0)}, 4')
    e(f's_mul_i32 {s(sT)}, {s(sX0)}, 192'); e(f's_add_u32 {s(sXo)}, {s(sT)}, 576'); e(f's_sub_u32 {s(sT)}, {s(sT)}, 384')
    e(f'v_add_u32 {v(vLD0)}, {s(sT)}, {v(aL16)}')
    e('v_mul_u32_u24 v3, 1366, v0'); e('v_lshrrev_b32 v3, 16, v3')
    e('v_mul_u32_u24 v4, 48, v3'); e('v_sub_u32 v4, v0, v4')
    e('v_mul_u32_u24 v5, 960, v3'); e('v_lshl_add_u32 v5, v4, 2, v5')
    e('v_mul_u32_u24 v6, 576, v3'); e('v_lshl_add_u32 v6, v4, 2, v6'); e('v_subrev_u32 v6, 576, v6')
    e('v_cmp_eq_u32 vcc, 0, v3'); e(f'v_mov_b32 v7, {OOB}'); e('v_cndmask_b32 v6, v6, v7, vcc')
    e('v_bfe_u32 v7, v1, 2, 2'); e('v_mul_u32_u24 v7, 768, v7'); e('v_lshrrev_b32 v8, 4, v1'); e('v_lshl_add_u32 v7, v8, 6, v7')
    e('v_and_b32 v8, 3, v1'); e('v_lshl_add_u32 v7, v8, 4, v7')
    e('s_waitcnt lgkmcnt(0)')
    for x in srd(sDL, 6, 1728) + srd(sDS, 8, 4800) + srd(sW1, 10, 73728) + srd(sW2, 12, 73728) + srd(sO, 14, 0): e(x)
    dwl = []
    for j in range(5): e(f'buffer_load_dword v{10+j}, v5, {s(sDS,4)}, 0 offen offset:{192*j}')
    for j in range(3): e(f'buffer_load_dword v{15+j}, v6, {s(sDL,4)}, 0 offen offset:{192*j}')
    e(f's_mul_i32 {s(sT)}, {s(sWv)}, 18432'); e(f's_add_u32 m0, {s(sT)}, {W1S}'); e(f's_mov_b32 {s(sT+1)}, {s(sT)}')
    w1d = []
    for rq in range(6):
        for cb in range(3):
            x = I(f'buffer_load_dwordx4 v7, {s(sW1,4)}, {s(sT+1)} offen offset:{256*cb} lds'); P.append(x); w1d.append(x)
            e(f's_add_u32 m0, m0, {768 if cb < 2 else 1536}')
        e(f's_add_u32 {s(sT+1)}, {s(sT+1)}, 3072')
    e(f's_add_u32 {s(sT+1)}, {s(sT)}, {W2S[0]}'); e(f's_cmp_eq_u32 {s(sWv)}, 3'); e(f's_cselect_b32 m0, {W2S[3]}, {s(sT+1)}')
    w2d = []
    for i in range(18):
        x = I(f'buffer_load_dwordx4 {v(aL16)}, {s(sW2,4)}, {s(sT)} offen offset:{1024*(i%4)} lds'); P.append(x); w2d.append(x)
        if i % 4 == 3: e('s_add_u32 m0, m0, 4096'); e(f's_add_u32 {s(sT)}, {s(sT)}, 4096')
    e(f's_mul_i32 {s(sT)}, {s(sWv)}, 3'); e(f's_add_u32 {s(sT)}, {s(sT)}, {s(sY0)}'); e(f's_sub_u32 {s(sLY)}, {s(sT)}, 2')
    e(f's_mul_i32 {s(sT)}, {s(sLY)}, 98304'); e(f's_ashr_i32 {s(sT+1)}, {s(sT)}, 31')
    e(f's_add_u32 {s(sX)}, s4, {s(sT)}'); e(f's_addc_u32 {s(sX+1)}, s5, {s(sT+1)}'); e(f's_and_b32 {s(sX+1)}, {s(sX+1)}, 0xffff'); e(f's_mov_b32 {s(sX+3)}, 0x00020000')
    for r in range(3):
        e(f's_cmp_lt_u32 {s(sLY)}, 512'); e(f's_cselect_b32 {s(sX+2)}, 98304, 0')
        P.extend(load_row(D + 16 * r, 0)); P.extend(adv_x(1, 0)); e(f's_add_u32 {s(sLY)}, {s(sLY)}, 1')
    e(f's_sub_u32 {s(sT)}, 9, {s(sWv)}'); e(f's_add_u32 {s(sLY)}, {s(sLY)}, {s(sT)}'); e(f's_mul_i32 {s(sT)}, {s(sT)}, 98304')
    e(f's_add_u32 {s(sX)}, {s(sX)}, {s(sT)}'); e(f's_addc_u32 {s(sX+1)}, {s(sX+1)}, 0')
    e(f's_add_u32 {s(sLim)}, {s(sY0)}, 66'); e(f's_min_u32 {s(sLim)}, {s(sLim)}, 512')
    c0 = 2 * math.sqrt(2 / math.pi) * math.log2(math.e); c1 = c0 * 0.044715
    e(f's_mov_b32 {s(sK)}, {hex(f2u(A16 * 2.0 ** -KEXP))}'); e(f's_mov_b32 {s(sC)}, 0x44e944e9'); e(f's_mov_b32 {s(sA)}, 0x37803780')
    e(f's_mov_b32 {s(s96)}, {hex(f2u(1/96))}'); e(f's_mov_b32 {s(sEps)}, {hex(f2u(1e-5))}'); e(f's_mov_b32 {s(sKi)}, {KEXP}')
    nit = cfg.NB * 64 // 256
    e(f's_mov_b32 {s(sT)}, {hex(f2u(-c0 / A16))}'); e(f's_mov_b32 {s(sT+1)}, {hex(f2u(-c1 / A16**3))}'); e(f's_mov_b32 {s(sT+2)}, {hex(f2u(1 / A16))}')
    e(f'v_mov_b32 v30, {s(sT)}')
    e('v_lshlrev_b32 v20, 17, v0'); e('v_or_b32 v20, 0x8000, v20'); e('v_lshlrev_b32 v21, 2, v0'); e(f'v_add_u32 v31, {LUTN}, v21'); e(f's_mov_b32 {s(sCnt)}, {nit}')
    e('L_lut:')
    e('v_add_u32 v22, 0x10000, v20')
    for (src, x, t, yp, yn) in [(20, 23, 24, 25, 26), (22, 27, 28, 29, 32)]:
        e(f'v_ldexp_f32 v{x}, v{src}, {s(sKi)}'); e(f'v_mul_f32 v{t}, v{x}, v{x}'); e(f'v_fma_f32 v{t}, v{t}, {s(sT+1)}, v30'); e(f'v_mul_f32 v{t}, v{t}, v{x}')
        e(f'v_exp_f32 v{t}, v{t}'); e(f'v_mul_f32 v{x}, {s(sT+2)}, v{x}'); e(f'v_add_f32 v{yp}, 1.0, v{t}'); e(f'v_rcp_f32 v{yp}, v{yp}')
        e(f'v_mul_f32 v{yp}, v{x}, v{yp}'); e(f'v_mul_f32_e64 v{yn}, -v{yp}, v{t}')
    e('v_cvt_pk_bf16_f32 v25, v25, v29'); e('v_cvt_pk_bf16_f32 v26, v26, v32')
    e(f'ds_write_b32 v21, v25 offset:{LUTP}'); e('ds_write_b32 v31, v26')
    e('v_add_u32 v20, 0x2000000, v20'); e('v_add_u32 v21, 1024, v21'); e('v_add_u32 v31, 1024, v31')
    e(f's_sub_u32 {s(sCnt)}, {s(sCnt)}, 1'); e(f's_cmp_lg_u32 {s(sCnt)}, 0'); e('s_cbranch_scc1 L_lut')
    P.extend(load_group(0))
    e('v_and_b32 v20, 3, v1')
    e('v_bfe_u32 v21, v1, 2, 2')
    e('v_bfe_u32 v22, v1, 4, 1')
    e('v_lshrrev_b32 v23, 5, v1')
    e('v_lshrrev_b32 v24, 4, v1')
    e('v_and_b32 v25, 1, v1')
    e('v_bfe_u32 v26, v1, 1, 1')
    e('v_lshl_add_u32 v27, v20, 1, v23'); e(f'v_mul_u32_u24 v27, {RS}, v27'); e('v_add_u32 v28, v21, v22'); e('v_lshl_add_u32 v27, v28, 4, v27')
    e(f's_mul_i32 {s(sT)}, {s(sWv)}, 1008'); e(f's_add_u32 {s(sT)}, {s(sT)}, {RBASE+B0}')
    e(f'v_add_u32 {v(aB)}, {s(sT)}, v27'); e(f'v_add_u32 {v(aB+1)}, {2*RS}, {v(aB)}'); e(f'v_add_u32 {v(aB+2)}, {4*RS}, {v(aB)}')
    e('v_lshl_add_u32 v27, v25, 2, v21'); e('v_lshlrev_b32 v27, 4, v27')
    e(f's_mul_i32 {s(sT)}, {s(sWv)}, {12*640}'); e(f's_add_u32 {s(sT)}, {s(sT)}, {ATAB}'); e(f'v_add_u32 v27, {s(sT)}, v27')
    e(f'v_mov_b32 v30, {OOB}')
    e('v_sub_u32 v28, v24, v26'); e('v_cmp_gt_i32 vcc, 0, v28'); e('v_lshl_add_u32 v28, v28, 7, v27'); e(f'v_cndmask_b32 {v(aA)}, v28, v30, vcc')
    e('v_sub_u32 v28, v23, v26'); e('v_cmp_lt_i32 vcc, 0, v28'); e('v_add_u32 v28, 4, v28'); e('v_lshl_add_u32 v28, v28, 7, v27'); e('v_lshl_add_u32 v28, v22, 3, v28')
    e(f'v_cndmask_b32 {v(aA+1)}, v28, v30, vcc')
    e('v_mul_u32_u24 v27, 0x5555, v25'); e(f'v_add_u32 {v(IDXC)}, 0x8888, v27')
    e(f's_mul_i32 {s(sT)}, {s(sWv)}, {RSTR}'); e(f's_add_u32 {s(sT)}, {s(sT)}, {REG}'); e(f'v_add_u32 {v(aOwn)}, {s(sT)}, {v(aL16)}')
    e(f's_xor_b32 {s(sT)}, {s(sWv)}, 1'); e(f's_mul_i32 {s(sT)}, {s(sT)}, {RSTR}'); e(f's_add_u32 {s(sT)}, {s(sT)}, {REG}'); e(f'v_add_u32 {v(aSend)}, {s(sT)}, {v(aL16)}')
    e(f's_and_b32 {s(sT+3)}, {s(sWv)}, 1'); e(f's_lshl_b32 {s(sT)}, {s(sT+3)}, 13'); e(f's_add_u32 {s(sT)}, {s(sT)}, {WLDS}'); e(f'v_add_u32 {v(aW)}, {s(sT)}, {v(aL16)}')
    e('v_bfe_u32 v27, v1, 2, 1'); e('v_lshl_add_u32 v27, v27, 1, v25'); e('v_bfe_u32 v28, v1, 3, 1'); e('v_xor_b32 v28, v28, v26'); e('v_lshl_add_u32 v27, v28, 2, v27')
    e('v_lshl_add_u32 v27, v24, 3, v27'); e('v_lshlrev_b32 v27, 4, v27'); e(f'v_mul_u32_u24 v28, {2*RSTR}, v26')
    e(f's_mul_i32 {s(sT)}, {s(sWv)}, 1536'); e(f's_add_u32 {s(sT)}, {s(sT)}, {REG}'); e(f'v_add3_u32 {v(aHW)}, v27, v28, {s(sT)}')
    e(f's_lshr_b32 {s(sT+2)}, {s(sWv)}, 1')
    e('v_bfe_u32 v27, v1, 2, 1'); e(f'v_xor_b32 v27, {s(sT+2)}, v27'); e('v_lshl_add_u32 v27, v27, 1, v26'); e('v_bfe_u32 v28, v1, 3, 2'); e('v_lshl_add_u32 v27, v27, 2, v28')
    e(f's_lshl_b32 {s(sT)}, {s(sT+2)}, 2'); e(f's_add_u32 {s(sT+2)}, {s(sT)}, {s(sT+3)}')
    e(f'v_mul_u32_u24 v28, {2*RS}, v25'); e('v_lshl_add_u32 v28, v27, 2, v28'); e('v_mul_u32_u24 v29, 336, v23')
    e(f's_mul_i32 {s(sT)}, {s(sT+2)}, {RS}'); e(f's_add_u32 {s(sT)}, {s(sT)}, {RBASE+B0+2*RS+8}'); e(f'v_add3_u32 {v(aX)}, v28, v29, {s(sT)}')
    e('v_lshl_add_u32 v28, v25, 10, v27'); e('v_mul_u32_u24 v28, 192, v28'); e(f'v_lshl_add_u32 {v(vST)}, v23, 4, v28')
    e(f's_add_u32 {s(sT)}, {s(sT+2)}, {s(sY0)}'); e(f's_sub_u32 {s(sT)}, {s(sT)}, 8'); e(f's_lshl_b32 {s(sT)}, {s(sT)}, 9'); e(f's_add_u32 {s(sT)}, {s(sT)}, {s(sX0)}'); e(f's_mul_i32 {s(sSt)}, {s(sT)}, 192')
    e('v_mul_u32_u24 v27, 43, v1'); e('v_lshrrev_b32 v27, 9, v27'); e('v_mul_u32_u24 v28, 12, v27'); e('v_sub_u32 v28, v1, v28')
    e('v_mul_u32_u24 v28, 336, v28'); e('v_lshl_add_u32 v28, v27, 2, v28'); e(f'v_add_u32 v28, {RBASE}, v28'); e('v_cmp_lt_u32 vcc, 59, v1'); e(f'v_cndmask_b32 {v(aRW)}, v28, v30, vcc')
    def nib(gA): return sum((4 if (2 * gA + (i & 1)) in cfg.CP else 8) << (4 * i) for i in range(4))
    assert all(((p + 4) in cfg.CP) == (p in cfg.CP) for p in range(4))
    e(f'v_mov_b32 v27, {hex(nib(0) | 0x44440000)}'); e(f'v_mov_b32 v28, {hex(nib(1) | 0x44440000)}'); e('v_cmp_eq_u32 vcc, 1, v23'); e('v_cndmask_b32 v27, v27, v28, vcc')
    e('v_mul_u32_u24 v28, 0xaaaa, v26'); e(f'v_lshl_add_u32 {v(IDX)}, v28, 16, v27')
    e('v_lshlrev_b32 v27, 4, v25'); e('v_mov_b32 v28, 0x3f80'); e('v_lshlrev_b32 v27, v27, v28'); e('v_cmp_eq_u32 vcc, v22, v23'); e('v_cndmask_b32 v27, 0, v27, vcc')
    e('v_bfe_u32 v28, v1, 2, 1'); e('v_bfe_u32 v29, v1, 3, 1'); e('v_lshl_add_u32 v28, v28, 1, v29')
    for i in range(4): e(f'v_cmp_eq_u32 vcc, {i}, v28'); e(f'v_cndmask_b32 {v(ID+i)}, 0, v27, vcc')
    e(f'v_mov_b32 {v(ZZ)}, 0'); e(f'v_mov_b32 {v(ZZ+1)}, 0')
    e('v_lshlrev_b32 v32, 6, v21'); e('v_lshl_add_u32 v32, v22, 5, v32'); e('v_lshl_add_u32 v32, v20, 3, v32'); e('v_mul_u32_u24 v27, 6144, v23')
    e(f's_mul_i32 {s(sT)}, {s(sT+3)}, 1536'); e(f's_add_u32 {s(sT)}, {s(sT)}, {W1S}'); e(f'v_add3_u32 v32, v32, v27, {s(sT)}'); e('v_add_u32 v33, 36864, v32')
    e('v_lshl_add_u32 v27, v23, 3, v21'); e('v_mul_u32_u24 v27, 192, v27'); e('v_lshl_add_u32 v27, v22, 5, v27'); e('v_lshl_add_u32 v27, v25, 4, v27'); e('v_lshl_add_u32 v27, v26, 3, v27')
    e(f's_cmp_eq_u32 {s(sT+3)}, 1'); e(f's_mov_b32 {s(sT+1)}, {W2S[2]}'); e(f's_cselect_b32 {s(sT)}, {s(sT+1)}, {W2S[0]}'); e(f'v_add_u32 v34, {s(sT)}, v27')
    e(f's_mov_b32 {s(sT+1)}, {W2S[3]}'); e(f's_cselect_b32 {s(sT)}, {s(sT+1)}, {W2S[1]}'); e(f'v_add_u32 v35, {s(sT)}, v27')
    e('s_mov_b32 s60, 0xffff0000')
    for c in range(2):
        for j in range(5): e(f'v_lshlrev_b32 v{36+j}, 16, v{10+j}' if c == 0 else f'v_and_b32 v{36+j}, s60, v{10+j}')
        for j in range(3):
            e(f'v_lshlrev_b32 v41, 16, v{15+j}' if c == 0 else f'v_and_b32 v41, s60, v{15+j}'); e(f'v_add_f32 v{37+j}, v{37+j}, v41')
        q = 48 + 16 * c
        e(f'v_cvt_pk_bf16_f32 v{q}, v36, v37'); e(f'v_cvt_pk_bf16_f32 v{q+1}, v38, v39'); e(f'v_cvt_pk_bf16_f32 v{q+2}, v40, 0'); e(f'v_mov_b32 v{q+3}, 0')
        e(f'v_cvt_pk_bf16_f32 v{q+4}, 0, v36'); e(f'v_cvt_pk_bf16_f32 v{q+5}, v37, v38'); e(f'v_cvt_pk_bf16_f32 v{q+6}, v39, v40'); e(f'v_mov_b32 v{q+7}, 0')
        e(f'v_mov_b32 v{q+8}, 0'); e(f'v_mov_b32 v{q+12}, 0')
        for j in range(3): e(f'v_mov_b32 v{q+9+j}, v{q+j}'); e(f'v_mov_b32 v{q+13+j}, v{q+4+j}')
    e('v_mul_u32_u24 v42, 640, v4'); e('v_lshl_add_u32 v42, v3, 7, v42'); e(f'v_add_u32 v42, {ATAB}, v42'); e('v_cmp_lt_u32 vcc, 4, v3'); e('v_cndmask_b32 v42, v42, v30, vcc')
    e('v_lshrrev_b32 v27, 1, v1'); e('v_lshlrev_b32 v27, 6, v27'); e('v_lshl_add_u32 v27, v25, 3, v27')
    e(f's_mul_i32 {s(sT)}, {s(sWv)}, 18432'); e(f's_add_u32 {s(sT)}, {s(sT)}, {W1S}'); e(f'v_add_u32 v27, {s(sT)}, v27')
    e(f's_mul_i32 {s(sT)}, {s(sKi)}, 0x00800080'); e(f'v_mov_b32 v28, {s(sT)}')
    adds = []
    for p in cfg.CP:
        for i in range(9):
            x = I(f'ds_add_u32 v27, v28 offset:{2048*i + 16*(p>>1) + 4*(p&1)}', done=w1d); P.append(x); adds.append(x)
    P.append(I('s_barrier', done=adds + w1d))
    LT = 80
    def dst(f, jj): return v(LT + 4 * LFR.index(f) + 2 * jj, 2) if f in LFR else ar(areg(f) + 2 * jj, 2)
    trs = []
    for b in range(6):
        for k in range(6):
            for jj in range(2):
                x = I(f'ds_read_b64_tr_b16 {dst(("g1",b,k),jj)}, v{32 + k//3} offset:{(4*(k%3)+jj)*3072 + 256*b}'); P.append(x); trs.append(x)
    P.append(I('s_barrier', done=w2d))
    for b in range(6):
        for t in range(2):
            for ob in range(3):
                for jj in range(2):
                    x = I(f'ds_read_b64_tr_b16 {dst(("g2",b,t,ob),jj)}, v{34 + b//3} offset:{(32*(b%3)+16*t+4*jj)*192 + 64*ob}'); P.append(x); trs.append(x)
    P.append(I('s_barrier', done=trs))
    wr = []
    for i in range(8):
        x = I(f'ds_write_b128 v42, {v(48+4*i,4)} offset:{16*i}'); P.append(x); wr.append(x)
    e(f's_mul_i32 {s(sRW)}, {s(sWv)}, {3*RS}'); e(f's_add_u32 {s(sRW)}, {s(sRW)}, {B0}')
    rl, rw = ring_write(0, 1, D, 3, 27); P.extend(rl); wr += rw
    for i in range(8):
        x = I(f'ds_write_b128 {v(aW)}, {v(LT+4*i,4)} offset:{1024*i}'); P.append(x); wr.append(x)
    e(f's_mul_i32 {s(sRW)}, {s(sWv)}, {2*RS}'); e(f's_add_u32 {s(sRW)}, {s(sRW)}, {B0+12*RS}'); e(f's_sub_u32 {s(sT)}, {s(sRW)}, {WP}'); e(f's_min_u32 {s(sRW)}, {s(sRW)}, {s(sT)}')
    bA = I('s_barrier', done=wr); P.append(bA)
    Q = []
    cv, cvr = conv(0.0, 1.2, [(0, 12), (18, 30), (36, 48), (54, 66)]); Q += cv
    sw = stats_write(1.9); Q.append(sw)
    bs = I('s_barrier', 2.0, done=[sw] + cvr); Q.append(bs)
    for q in range(3): Q += adv_ring_v(aB + q, TMP, 1.91)
    rl, rw = ring_write(2.03, 2.3, STG, 2, TMP, after=[bs]);
    nl, nr, hw = normalize(2.01, 3.0, CB, bs, bs); Q += nl; Q += rl
    Q += adv_ring_s(2.5)
    Q += load_group(2.6)
    b0 = I('s_barrier', 3.1, done=hw + rw); Q.append(b0)
    Q += hread(aSend, 3.2, after=[b0])
    P += schedule(Q, LDSLAT=128, look=0.5, maxds=8)
    e(f's_mov_b32 {s(sCnt)}, {cfg.nsteps}')
    e('s_waitcnt lgkmcnt(0)')
    return P

def emit(seq): return '\n'.join((x.text if x.kind == 'label' else '    ' + x.text) for x in seq) + '\n'

def build(out):
    pro = fix_waits(prologue(), LSAFE=10**9)
    body = schedule(loop_body(), LDSLAT=cfg.LDSLAT, look=cfg.look, maxds=cfg.maxds, verbose=True)
    body += [I(f's_sub_u32 {s(sCnt)}, {s(sCnt)}, 1'), I(f's_cmp_lg_u32 {s(sCnt)}, 0'), I('s_cbranch_scc1 L_loop')]
    body = fix_waits(body, loop=True, LSAFE=cfg.LSAFE)
    dr = schedule(drain(), LDSLAT=150, look=0.6, maxds=4)
    dr = fix_waits(body + dr, LSAFE=cfg.LSAFE)[len(body):]
    from collections import Counter
    print('prologue', len(pro), estimate(pro), 'body', len(body), estimate(body), Counter(x.kind for x in body), 'drain', len(dr), estimate(dr))
    k = NAME + '_kernel'
    txt = f'; @launch grid=(256,1,1) block=(256,1,1) lds={LDSSZ}\n.amdgcn_target "amdgcn-amd-amdhsa--gfx950"\n.text\n.globl {k}\n.p2align 8\n.type {k},@function\n{k}:\n'
    txt += emit(pro) + '.p2align 6\nL_loop:\n' + emit(body) + emit(dr) + 'L_end:\n    s_endpgm\n'
    txt += f""".section .rodata,"a"
.p2align 6
.amdhsa_kernel {k}
  .amdhsa_next_free_vgpr 512
  .amdhsa_next_free_sgpr 96
  .amdhsa_accum_offset 256
  .amdhsa_group_segment_fixed_size 0
  .amdhsa_kernarg_size 64
  .amdhsa_user_sgpr_count 2
  .amdhsa_user_sgpr_kernarg_segment_ptr 1
  .amdhsa_system_sgpr_workgroup_id_x 1
  .amdhsa_float_denorm_mode_32 3
.end_amdhsa_kernel
"""
    open(out, 'w').write(txt)

if __name__ == '__main__':
    for a in sys.argv[2:]:
        kk, vv = a.split('=')
        setattr(cfg, kk, eval(vv))
    build(sys.argv[1])
```

```python
import sys, math, struct, argparse
from asmlib import *
NAME = 'standalone__modern_conv_block_replknet__vision'
def f2u(x): return struct.unpack('<I', struct.pack('<f', x))[0]

class Cfg:
    CP = (3, 7)
    NB = 24
    LDF = 'nt'
    STF = ''
    dbg = ''
    LDSLAT = 230; look = 0.6; maxds = 3; LSAFE = 200
    nsteps = 8
cfg = Cfg()

LUTP = 0; ATAB = 6144; REG = 36864; RSTR = 7168; LUTN = 65536
RBASE = 71680; B0 = 256; RS = 4064; WP = 18 * RS + 64
WLDS = RBASE + B0 + 18 * RS
LDSSZ = 163840
W1S = 71680; W2S = [6144, 6144 + 18432, 6144 + 2 * 18432, 145408]
OOB = 0x28000
ACC2 = 0; ACC1 = 48; H = 96; D = 120; STG = 168; CB = 200; CA = 212; WB = 218; GT = 226; ID = 230; ZZ = 234
ST = 236; IDX = 240; IDXC = 241; aB = 242; aA = 245; aX = 247; aOwn = 248; aSend = 249; aL16 = 250; aW = 251; aHW = 252; aRW = 253; vLD0 = 254; vST = 255
TMP = 216
sX = 16; sO = 20; sDL = 24; sDS = 28; sW1 = 32; sW2 = 36
sWv = 40; sY0 = 41; sX0 = 42; sCnt = 43; sSt = 44; sRW = 45; sLY = 46; sXo = 47; sK = 48; sC = 49; sA = 50; s96 = 51; sEps = 52; sKi = 53; sLim = 54
sT = 56
A16 = 0.46875
KEXP = 110

def v(a, n=1): return f'v{a}' if n == 1 else f'v[{a}:{a+n-1}]'
def ar(a, n=1): return f'a{a}' if n == 1 else f'a[{a}:{a+n-1}]'
def s(a, n=1): return f's{a}' if n == 1 else f's[{a}:{a+n-1}]'

LFR = [('g2', b, 1, 2) for b in range(6)] + [('g2', 1, 0, 2), ('g2', 4, 0, 2)]
ALLF = [('g1', b, k) for b in range(6) for k in range(6)] + [('g2', b, t, ob) for b in range(6) for t in range(2) for ob in range(3)]
AFR = [f for f in ALLF if f not in LFR]
assert len(AFR) == 64
def areg(f): return 4 * AFR.index(f)

SD0 = 'dst_sel:WORD_0 dst_unused:UNUSED_PRESERVE src0_sel:WORD_0'
SD1 = 'dst_sel:WORD_1 dst_unused:UNUSED_PRESERVE src0_sel:WORD_1'

def g1(u, t0):
    b = u % 6; a = ACC1 + 16 * (u % 3)
    return [I(f'v_mfma_f32_32x32x16_bf16 {v(a,16)}, {ar(areg(("g1",b,k)),4)}, {v(H+4*k,4)}, ' + ('0' if k == 0 else v(a, 16)), t0 + k / 12) for k in range(6)]

wbsel = [0]
def g2(u, t0, obmajor):
    b = u % 6; a = ACC1 + 16 * (u % 3); L = []
    order = [(t, ob) for ob in range(3) for t in range(2)] if obmajor else [(t, ob) for t in range(2) for ob in range(3)]
    for i, (t, ob) in enumerate(order):
        f = ('g2', b, t, ob); tt = t0 + i / 12
        if f in LFR:
            wb = WB + 4 * wbsel[0]; wbsel[0] ^= 1
            L.append(I(f'ds_read_b128 {v(wb,4)}, {v(aW)} offset:{1024*LFR.index(f)}', tt - 0.6))
            A = v(wb, 4)
        else: A = ar(areg(f), 4)
        L.append(I(f'v_smfmac_f32_32x32x32_bf16 {v(ACC2+16*ob,16)}, {A}, {v(a+8*t,8)}, {v(IDX)}', tt, comm=True))
    return L

def elem(u, t0, span=1.0):
    a = ACC1 + 16 * (u % 3); L = []
    lut = [r for r in range(16) if (r // 2) not in cfg.CP]
    n = len(lut)
    for i, r in enumerate(lut):
        tt = t0 + span * i / max(n, 1)
        L.append(I(f'v_lshlrev_b32_sdwa {v(a+r)}, 1, {v(a+r)} dst_sel:DWORD dst_unused:UNUSED_PAD src0_sel:DWORD src1_sel:WORD_1', tt - 0.09))
        L.append(I(f'ds_read_u16 {v(a+r)}, {v(a+r)} offset:{LUTP}', tt))
    cp = list(cfg.CP); C = []
    for i in range(0, len(cp), 2):
        grp = cp[i:i + 2]
        X = lambda j: v(GT + j); T = lambda j: v(GT + 2 + j)
        st = [lambda j, p: f'v_cvt_pk_f16_f32 {X(j)}, {v(a+2*p)}, {v(a+2*p+1)}',
              lambda j, p: f'v_pk_fma_f16 {T(j)}, {X(j)}, {X(j)}, {s(sC)}',
              lambda j, p: f'v_pk_mul_f16 {T(j)}, {X(j)}, {T(j)} neg_lo:[1,0] neg_hi:[1,0]',
              lambda j, p: f'v_exp_f16_sdwa {T(j)}, {T(j)} {SD0}',
              lambda j, p: f'v_exp_f16_sdwa {T(j)}, {T(j)} {SD1}',
              lambda j, p: f'v_pk_fma_f16 {T(j)}, {T(j)}, {s(sA)}, {s(sA)}',
              lambda j, p: f'v_rcp_f16_sdwa {T(j)}, {T(j)} {SD0}',
              lambda j, p: f'v_rcp_f16_sdwa {T(j)}, {T(j)} {SD1}',
              lambda j, p: f'v_fma_mix_f32 {v(a+2*p)}, {v(a+2*p)}, {T(j)}, 0 op_sel:[0,0,0] op_sel_hi:[0,1,0]',
              lambda j, p: f'v_fma_mix_f32 {v(a+2*p+1)}, {v(a+2*p+1)}, {T(j)}, 0 op_sel:[0,1,0] op_sel_hi:[0,1,0]',
              lambda j, p: f'v_cvt_pk_bf16_f32 {v(a+2*p)}, {v(a+2*p)}, {v(a+2*p+1)}']
        for f in st:
            for j, p in enumerate(grp): C.append(f(j, p))
    for i, x in enumerate(C): L.append(I(x, t0 + span * i / len(C)))
    return L

def zero16(r, t): return I(f'v_mfma_f32_32x32x8_bf16 {v(r,16)}, {v(ZZ,2)}, {v(ZZ,2)}, 0', t)

def pack_acc2(t0, sink):
    L = []; outs = []
    for ob in range(3):
        r = ACC2 + 16 * ob; tt = t0 + ob * 0.15
        for i in range(8): L.append(I(f'v_cvt_pk_bf16_f32 {v(r+i)}, {v(r+2*i)}, {v(r+2*i+1)}', tt + i * 0.01))
        for q in range(2):
            x = sink(2 * ob + q, r + 4 * q, tt + 0.1); L.append(x); outs.append(x)
        L.append(zero16(r, tt + 0.2))
    return L, outs

def conv(t0, t1, bufs, after=()):
    L = []; rds = []; dt = (t1 - t0) / 12
    for i in range(3): L.append(zero16(D + 16 * i, t0 - 0.02 + i * 4 * dt))
    for p in range(12):
        cb, ca = bufs[p % len(bufs)]; tt = t0 + p * dt
        off = (p // 4) * 336 + (p % 4) * 80
        R = [I(f'ds_read_b128 {v(cb+4*q,4)}, {v(aB+q)} offset:{off}', tt + q * dt * 0.12, after=after) for q in range(3)]
        R += [I(f'ds_read_b128 {v(ca,4)}, {v(aA)} offset:{640*p}', tt + dt * 0.36), I(f'ds_read_b64 {v(ca+4,2)}, {v(aA+1)} offset:{640*p}', tt + dt * 0.48)]
        L += R; rds += R[:3]
        d = D + 4 * p; tm = tt + dt * (len(bufs) - 0.05)
        L.append(I(f'v_smfmac_f32_16x16x64_bf16 {v(d,4)}, {v(ca,4)}, {v(cb,8)}, {v(IDXC)}', tm - 0.1))
        L.append(I(f'v_smfmac_f32_16x16x32_bf16 {v(d,4)}, {v(ca+4,2)}, {v(cb+8,4)}, {v(IDXC)}', tm))
        V = []
        for oy in range(2):
            a, b = v(d + 2 * oy), v(d + 2 * oy + 1); S, Q = v(ST + oy), v(ST + 2 + oy)
            if p == 0: V.append([f'v_add_f32 {S}, {a}, {b}', f'v_mul_f32 {Q}, {a}, {a}', f'v_fmac_f32 {Q}, {b}, {b}'])
            else: V.append([f'v_add_f32 {S}, {S}, {a}', f'v_fmac_f32 {Q}, {a}, {a}', f'v_add_f32 {S}, {S}, {b}', f'v_fmac_f32 {Q}, {b}, {b}'])
        V = [x for pr in zip(*V) for x in pr]
        for i, x in enumerate(V): L.append(I(x, tm + 0.15 + dt * i / len(V)))
    return L, rds

def stats_write(t): return I(f'ds_write_b128 {v(aOwn)}, {v(ST,4)} offset:6144', t)

def normalize(t0, t1, tb, bar_stats, bar_h):
    L = []
    R = [I(f'ds_read_b128 {v(tb+4*w,4)}, {v(aL16)} offset:{REG+RSTR*w+6144}', t0 + 0.02 * w, after=[bar_stats]) for w in range(4)]
    L += R; V = []
    for i in range(4): V.append(f'v_add_f32 {v(tb+i)}, {v(tb+i)}, {v(tb+4+i)}')
    for i in range(4): V.append(f'v_add_f32 {v(tb+8+i)}, {v(tb+8+i)}, {v(tb+12+i)}')
    for i in range(4): V.append(f'v_add_f32 {v(ST+i)}, {v(tb+i)}, {v(tb+8+i)}')
    for oy in range(2): V.append(f'v_mul_f32 {v(ST+oy)}, {s(s96)}, {v(ST+oy)}')
    for oy in range(2): V.append(f'v_mul_f32 {v(ST+2+oy)}, {s(s96)}, {v(ST+2+oy)}')
    for oy in range(2): V.append(f'v_fma_f32 {v(ST+2+oy)}, -{v(ST+oy)}, {v(ST+oy)}, {v(ST+2+oy)}')
    for oy in range(2): V.append(f'v_max_f32 {v(ST+2+oy)}, 0, {v(ST+2+oy)}')
    for oy in range(2): V.append(f'v_add_f32 {v(ST+2+oy)}, {s(sEps)}, {v(ST+2+oy)}')
    for oy in range(2): V.append(f'v_rsq_f32 {v(ST+2+oy)}, {v(ST+2+oy)}')
    for oy in range(2): V.append(f'v_mul_f32 {v(ST+2+oy)}, {s(sK)}, {v(ST+2+oy)}')
    for oy in range(2): V.append(f'v_mul_f32_e64 {v(ST+oy)}, -{v(ST+oy)}, {v(ST+2+oy)}')
    W = []
    for c in range(3):
        r = D + 16 * c
        for (dst, src) in [(0, 0), (1, 4), (4, 2), (5, 6), (2, 8), (3, 12), (6, 10), (7, 14)]:
            oy = (src >> 1) & 1
            V.append(f'v_fma_f32 {v(r+src)}, {v(r+src)}, {v(ST+2+oy)}, {v(ST+oy)}')
            V.append(f'v_fma_f32 {v(r+src+1)}, {v(r+src+1)}, {v(ST+2+oy)}, {v(ST+oy)}')
            V.append(f'v_cvt_pk_bf16_f32 {v(r+dst)}, {v(r+src)}, {v(r+src+1)}')
        for oy in range(2): V.append(('w', f'ds_write_b128 {v(aHW)}, {v(r+4*oy,4)} offset:{512*c+RSTR*oy}'))
    ts = t0 + 0.4
    for i, x in enumerate(V):
        tt = ts + (t1 - ts) * i / len(V)
        if isinstance(x, tuple):
            y = I(x[1], tt, after=[bar_h]); W.append(y); L.append(y)
        else: L.append(I(x, tt))
    return L, R, W

def ring_write(t0, t1, src, nrows, tmp, after=()):
    L = []; W = []; n = 8 * nrows; k = 0
    for r in range(nrows):
        tt = t0 + (t1 - t0) * k / n
        L.append(I(f'v_add_u32 {v(tmp)}, {s(sRW)}, {v(aRW)}' if r == 0 else f'v_add_u32 {v(tmp)}, {RS}, {v(tmp)}', tt - 0.1))
        for i in range(4):
            for j in (0, 2):
                q = src + 16 * r + 4 * i + j
                x = I(f'ds_write2_b32 {v(tmp)}, {v(q)}, {v(q+1)} offset0:{5*i+20*j} offset1:{5*i+20*j+20}', t0 + (t1 - t0) * k / n, after=after)
                L.append(x); W.append(x); k += 1
    return L, W

def load_row(dst, t):
    L = [I(f'buffer_load_dwordx4 {v(dst,4)}, {v(vLD0)}, {s(sX,4)}, 0 offen {cfg.LDF}', t)]
    for i in range(1, 4):
        L.append(I(f'buffer_load_dwordx4 {v(dst+4*i,4)}, {v(aL16)}, {s(sX,4)}, {s(sXo)} offen offset:{960*(i-1)} {cfg.LDF}', t + 0.04 * i))
    return L
def adv_x(nrows, t):
    return [I(f's_add_u32 {s(sX)}, {s(sX)}, {98304*nrows}', t), I(f's_addc_u32 {s(sX+1)}, {s(sX+1)}, 0', t)]
def load_group(t0):
    L = [I(f's_cmp_lt_u32 {s(sLY)}, {s(sLim)}', t0 - 0.1), I(f's_cselect_b32 {s(sX+2)}, 98304, 0', t0 - 0.1)]
    L += load_row(STG, t0) + adv_x(1, t0 + 0.2) + load_row(STG + 16, t0 + 0.25) + adv_x(7, t0 + 0.45)
    L.append(I(f's_add_u32 {s(sLY)}, {s(sLY)}, 8', t0 + 0.46))
    return L
def adv_ring_s(t):
    return [I(f's_add_u32 {s(sRW)}, {s(sRW)}, {8*RS}', t), I(f's_sub_u32 {s(sT)}, {s(sRW)}, {WP}', t), I(f's_min_u32 {s(sRW)}, {s(sRW)}, {s(sT)}', t)]
def adv_ring_v(r, tmp, t):
    c1 = (8 * RS - RBASE) & 0xffffffff
    return [I(f'v_add_u32 {v(r)}, {hex(c1)}, {v(r)}', t), I(f'v_subrev_u32 {v(tmp)}, {WP}, {v(r)}', t + 0.02),
            I(f'v_min_u32 {v(r)}, {v(r)}, {v(tmp)}', t + 0.04), I(f'v_add_u32 {v(r)}, {RBASE}, {v(r)}', t + 0.06)]

def idadd(ob, buf, t): return I(f'v_smfmac_f32_32x32x32_bf16 {v(ACC2+16*ob,16)}, {v(ID,4)}, {v(buf,8)}, {v(IDX)} abid:1', t, comm=True)
def hread(addr, t0, after=()):
    return [I(f'ds_read_b128 {v(H+4*k,4)}, {v(addr)} offset:{1024*k}', t0 + k / 12 + 0.01, after=after) for k in range(6)]
def store_sink(k6, r, t): return I(f'buffer_store_dwordx4 {v(r,4)}, {v(vST)}, {s(sO,4)}, {s(sSt)} offen offset:{32*k6} {cfg.STF}', t)

def epilogue(t0):
    L, outs = pack_acc2(t0, store_sink)
    L.append(I(f's_mov_b32 {s(sO+2)}, 50331648', t0 + 0.6))
    L.append(I(f's_add_u32 {s(sSt)}, {s(sSt)}, {8*98304}', t0 + 0.6))
    return L

def loop_body(with_conv=True):
    wbsel[0] = 0
    L = []
    TBS, TB3, TB4, TB0 = 7.3, 8.6, 9.55, 10.98
    cv, cvr = conv(0.05, 6.5, [(CB, CA)])
    L += cv
    sw = stats_write(TBS - 0.3); L.append(sw)
    bs = I('s_barrier', TBS, done=[sw] + cvr); L.append(bs)
    b4 = I('s_barrier', TB4)
    nl, nr, hw = normalize(TBS + 0.02, TB0 - 0.4, CB, bs, b4)
    nhead = [x for x in nl if x not in hw]
    for u in range(12):
        L += g1(u, u)
        if u == 5: hown = hread(aOwn, u); L += hown
        if u == 11:
            b0 = I('s_barrier', TB0, done=hw + rw); L.append(b0)
            L += hread(aSend, u, after=[b0])
            L += load_group(11.1)
        L += elem((u - 1) % 12, u + 0.04, 0.94)
        if u == 2: L += epilogue(1.85)
        if u == 8:
            L += nhead
            pl, hops = pack_acc2(7.85, lambda k6, r, t: I(f'ds_write_b128 {v(aOwn)}, {v(r,4)} offset:{1024*k6}', t, after=hown + [bs]))
            L += pl
            for q in range(3): L += adv_ring_v(aB + q, TMP, 6.7 + 0.2 * q)
            xr = []
            for ob in range(3):
                buf = CB + 8 * (ob % 2); tt = 7.85 + 0.2 * ob
                base = aX
                if ob: L.append(I(f'v_add_u32 {v(TMP+1)}, {1344*ob}, {v(aX)}', tt - 0.1)); base = TMP + 1
                for q in range(2):
                    for jj in range(2):
                        x = I(f'ds_read2_b32 {v(buf+4*q+2*jj,2)}, {v(base)} offset0:{168*q+40*jj} offset1:{168*q+40*jj+20}', tt + 0.03 * (2 * q + jj)); L.append(x); xr.append(x)
                L.append(idadd(ob, buf, tt + 0.45))
            L += adv_ring_v(aX, TMP, 8.5)
            b3 = I('s_barrier', TB3, done=hops, after=[bs]); L.append(b3)
            hr = []
            for ob in range(3):
                buf = CB + 8 * ((ob + 1) % 2); tt = TB3 + 0.05 + 0.25 * ob
                for q in range(2):
                    x = I(f'ds_read_b128 {v(buf+4*q,4)}, {v(aSend)} offset:{1024*(2*ob+q)}', tt, after=[b3]); L.append(x); hr.append(x)
                L.append(idadd(ob, buf, tt + 0.45))
            b4.done = hr + xr; L.append(b4)
            for i, x in enumerate(hw): x.t = max(x.t, TB4 + 0.05 + 0.1 * i)
            L += hw
            rl, rw = ring_write(TB4 + 0.05, TB0 - 0.4, STG, 2, TMP, after=[b4]); L += rl
            L += adv_ring_s(TB0 - 0.2)
        L += g2((u - 2) % 12, u + 0.5, obmajor=(u in (1, 7)))
    return L

def drain():
    wbsel[0] = 0
    L = []
    L += elem(11, 0.0, 0.6)
    L += g2(10, 0.3, False)
    L += g2(11, 1.0, True)
    L += [x for x in epilogue(1.3) if x.kind != 'mfma' and x.kind != 'salu']
    return L

def srd(d, b, n):
    return [f's_mov_b32 {s(d)}, {s(b)}', f's_and_b32 {s(d+1)}, {s(b+1)}, 0xffff', f's_mov_b32 {s(d+2)}, {n}', f's_mov_b32 {s(d+3)}, 0x00020000']

def prologue():
    P = []
    def e(x): P.append(I(x))
    LN = 1
    e('s_cmp_ge_u32 s2, 256'); e('s_cbranch_scc1 L_end')
    e('s_load_dwordx4 s[4:7], s[0:1], 0'); e('s_load_dwordx4 s[8:11], s[0:1], 16'); e('s_load_dwordx4 s[12:15], s[0:1], 32')
    if cfg.dbg: e('s_load_dwordx2 s[70:71], s[0:1], 56')
    e('v_lshrrev_b32 v2, 6, v0'); e('v_and_b32 v1, 63, v0'); e(f'v_readfirstlane_b32 {s(sWv)}, v2')
    e(f'v_lshlrev_b32 {v(aL16)}, 4, v1')
    e(f's_and_b32 {s(sY0)}, s2, 7'); e(f's_lshl_b32 {s(sY0)}, {s(sY0)}, 6')
    e(f's_lshr_b32 {s(sX0)}, s2, 3'); e(f's_lshl_b32 {s(sX0)}, {s(sX0)}, 4')
    e(f's_mul_i32 {s(sT)}, {s(sX0)}, 192'); e(f's_add_u32 {s(sXo)}, {s(sT)}, 576'); e(f's_sub_u32 {s(sT)}, {s(sT)}, 384')
    e(f'v_add_u32 {v(vLD0)}, {s(sT)}, {v(aL16)}')
    e('v_mul_u32_u24 v3, 1366, v0'); e('v_lshrrev_b32 v3, 16, v3')
    e('v_mul_u32_u24 v4, 48, v3'); e('v_sub_u32 v4, v0, v4')
    e('v_mul_u32_u24 v5, 960, v3'); e('v_lshl_add_u32 v5, v4, 2, v5')
    e('v_mul_u32_u24 v6, 576, v3'); e('v_lshl_add_u32 v6, v4, 2, v6'); e('v_subrev_u32 v6, 576, v6')
    e('v_cmp_eq_u32 vcc, 0, v3'); e(f'v_mov_b32 v7, {OOB}'); e('v_cndmask_b32 v6, v6, v7, vcc')
    e('v_bfe_u32 v7, v1, 2, 2'); e('v_mul_u32_u24 v7, 768, v7'); e('v_lshrrev_b32 v8, 4, v1'); e('v_lshl_add_u32 v7, v8, 6, v7')
    e('v_and_b32 v8, 3, v1'); e('v_lshl_add_u32 v7, v8, 4, v7')
    e('s_waitcnt lgkmcnt(0)')
    for x in srd(sDL, 6, 1728) + srd(sDS, 8, 4800) + srd(sW1, 10, 73728) + srd(sW2, 12, 73728) + srd(sO, 14, 0): e(x)
    dwl = []
    for j in range(5): e(f'buffer_load_dword v{10+j}, v5, {s(sDS,4)}, 0 offen offset:{192*j}')
    for j in range(3): e(f'buffer_load_dword v{15+j}, v6, {s(sDL,4)}, 0 offen offset:{192*j}')
    e(f's_mul_i32 {s(sT)}, {s(sWv)}, 18432'); e(f's_add_u32 m0, {s(sT)}, {W1S}'); e(f's_mov_b32 {s(sT+1)}, {s(sT)}')
    w1d = []
    for rq in range(6):
        for cb in range(3):
            x = I(f'buffer_load_dwordx4 v7, {s(sW1,4)}, {s(sT+1)} offen offset:{256*cb} lds'); P.append(x); w1d.append(x)
            e(f's_add_u32 m0, m0, {768 if cb < 2 else 1536}')
        e(f's_add_u32 {s(sT+1)}, {s(sT+1)}, 3072')
    e(f's_add_u32 {s(sT+1)}, {s(sT)}, {W2S[0]}'); e(f's_cmp_eq_u32 {s(sWv)}, 3'); e(f's_cselect_b32 m0, {W2S[3]}, {s(sT+1)}')
    w2d = []
    for i in range(18):
        x = I(f'buffer_load_dwordx4 {v(aL16)}, {s(sW2,4)}, {s(sT)} offen offset:{1024*(i%4)} lds'); P.append(x); w2d.append(x)
        if i % 4 == 3: e('s_add_u32 m0, m0, 4096'); e(f's_add_u32 {s(sT)}, {s(sT)}, 4096')
    e(f's_mul_i32 {s(sT)}, {s(sWv)}, 3'); e(f's_add_u32 {s(sT)}, {s(sT)}, {s(sY0)}'); e(f's_sub_u32 {s(sLY)}, {s(sT)}, 2')
    e(f's_mul_i32 {s(sT)}, {s(sLY)}, 98304'); e(f's_ashr_i32 {s(sT+1)}, {s(sT)}, 31')
    e(f's_add_u32 {s(sX)}, s4, {s(sT)}'); e(f's_addc_u32 {s(sX+1)}, s5, {s(sT+1)}'); e(f's_and_b32 {s(sX+1)}, {s(sX+1)}, 0xffff'); e(f's_mov_b32 {s(sX+3)}, 0x00020000')
    for r in range(3):
        e(f's_cmp_lt_u32 {s(sLY)}, 512'); e(f's_cselect_b32 {s(sX+2)}, 98304, 0')
        P.extend(load_row(D + 16 * r, 0)); P.extend(adv_x(1, 0)); e(f's_add_u32 {s(sLY)}, {s(sLY)}, 1')
    e(f's_sub_u32 {s(sT)}, 9, {s(sWv)}'); e(f's_add_u32 {s(sLY)}, {s(sLY)}, {s(sT)}'); e(f's_mul_i32 {s(sT)}, {s(sT)}, 98304')
    e(f's_add_u32 {s(sX)}, {s(sX)}, {s(sT)}'); e(f's_addc_u32 {s(sX+1)}, {s(sX+1)}, 0')
    e(f's_add_u32 {s(sLim)}, {s(sY0)}, 66'); e(f's_min_u32 {s(sLim)}, {s(sLim)}, 512')
    c0 = 2 * math.sqrt(2 / math.pi) * math.log2(math.e); c1 = c0 * 0.044715
    e(f's_mov_b32 {s(sK)}, {hex(f2u(A16 * 2.0 ** -KEXP))}'); e(f's_mov_b32 {s(sC)}, 0x44e944e9'); e(f's_mov_b32 {s(sA)}, 0x37803780')
    e(f's_mov_b32 {s(s96)}, {hex(f2u(1/96))}'); e(f's_mov_b32 {s(sEps)}, {hex(f2u(1e-5))}'); e(f's_mov_b32 {s(sKi)}, {KEXP}')
    nit = cfg.NB * 64 // 256
    e(f's_mov_b32 {s(sT)}, {hex(f2u(-c0 / A16))}'); e(f's_mov_b32 {s(sT+1)}, {hex(f2u(-c1 / A16**3))}'); e(f's_mov_b32 {s(sT+2)}, {hex(f2u(1 / A16))}')
    e(f'v_mov_b32 v30, {s(sT)}')
    e('v_lshlrev_b32 v20, 17, v0'); e('v_or_b32 v20, 0x8000, v20'); e('v_lshlrev_b32 v21, 2, v0'); e(f'v_add_u32 v31, {LUTN}, v21'); e(f's_mov_b32 {s(sCnt)}, {nit}')
    e('L_lut:')
    e('v_add_u32 v22, 0x10000, v20')
    for (src, x, t, yp, yn) in [(20, 23, 24, 25, 26), (22, 27, 28, 29, 32)]:
        e(f'v_ldexp_f32 v{x}, v{src}, {s(sKi)}'); e(f'v_mul_f32 v{t}, v{x}, v{x}'); e(f'v_fma_f32 v{t}, v{t}, {s(sT+1)}, v30'); e(f'v_mul_f32 v{t}, v{t}, v{x}')
        e(f'v_exp_f32 v{t}, v{t}'); e(f'v_mul_f32 v{x}, {s(sT+2)}, v{x}'); e(f'v_add_f32 v{yp}, 1.0, v{t}'); e(f'v_rcp_f32 v{yp}, v{yp}')
        e(f'v_mul_f32 v{yp}, v{x}, v{yp}'); e(f'v_mul_f32_e64 v{yn}, -v{yp}, v{t}')
    e('v_cvt_pk_bf16_f32 v25, v25, v29'); e('v_cvt_pk_bf16_f32 v26, v26, v32')
    e(f'ds_write_b32 v21, v25 offset:{LUTP}'); e('ds_write_b32 v31, v26')
    e('v_add_u32 v20, 0x2000000, v20'); e('v_add_u32 v21, 1024, v21'); e('v_add_u32 v31, 1024, v31')
    e(f's_sub_u32 {s(sCnt)}, {s(sCnt)}, 1'); e(f's_cmp_lg_u32 {s(sCnt)}, 0'); e('s_cbranch_scc1 L_lut')
    P.extend(load_group(0))
    e('v_and_b32 v20, 3, v1')
    e('v_bfe_u32 v21, v1, 2, 2')
    e('v_bfe_u32 v22, v1, 4, 1')
    e('v_lshrrev_b32 v23, 5, v1')
    e('v_lshrrev_b32 v24, 4, v1')
    e('v_and_b32 v25, 1, v1')
    e('v_bfe_u32 v26, v1, 1, 1')
    e('v_lshl_add_u32 v27, v20, 1, v23'); e(f'v_mul_u32_u24 v27, {RS}, v27'); e('v_add_u32 v28, v21, v22'); e('v_lshl_add_u32 v27, v28, 4, v27')
    e(f's_mul_i32 {s(sT)}, {s(sWv)}, 1008'); e(f's_add_u32 {s(sT)}, {s(sT)}, {RBASE+B0}')
    e(f'v_add_u32 {v(aB)}, {s(sT)}, v27'); e(f'v_add_u32 {v(aB+1)}, {2*RS}, {v(aB)}'); e(f'v_add_u32 {v(aB+2)}, {4*RS}, {v(aB)}')
    e('v_lshl_add_u32 v27, v25, 2, v21'); e('v_lshlrev_b32 v27, 4, v27')
    e(f's_mul_i32 {s(sT)}, {s(sWv)}, {12*640}'); e(f's_add_u32 {s(sT)}, {s(sT)}, {ATAB}'); e(f'v_add_u32 v27, {s(sT)}, v27')
    e(f'v_mov_b32 v30, {OOB}')
    e('v_sub_u32 v28, v24, v26'); e('v_cmp_gt_i32 vcc, 0, v28'); e('v_lshl_add_u32 v28, v28, 7, v27'); e(f'v_cndmask_b32 {v(aA)}, v28, v30, vcc')
    e('v_sub_u32 v28, v23, v26'); e('v_cmp_lt_i32 vcc, 0, v28'); e('v_add_u32 v28, 4, v28'); e('v_lshl_add_u32 v28, v28, 7, v27'); e('v_lshl_add_u32 v28, v22, 3, v28')
    e(f'v_cndmask_b32 {v(aA+1)}, v28, v30, vcc')
    e('v_mul_u32_u24 v27, 0x5555, v25'); e(f'v_add_u32 {v(IDXC)}, 0x8888, v27')
    e(f's_mul_i32 {s(sT)}, {s(sWv)}, {RSTR}'); e(f's_add_u32 {s(sT)}, {s(sT)}, {REG}'); e(f'v_add_u32 {v(aOwn)}, {s(sT)}, {v(aL16)}')
    e(f's_xor_b32 {s(sT)}, {s(sWv)}, 1'); e(f's_mul_i32 {s(sT)}, {s(sT)}, {RSTR}'); e(f's_add_u32 {s(sT)}, {s(sT)}, {REG}'); e(f'v_add_u32 {v(aSend)}, {s(sT)}, {v(aL16)}')
    e(f's_and_b32 {s(sT+3)}, {s(sWv)}, 1'); e(f's_lshl_b32 {s(sT)}, {s(sT+3)}, 13'); e(f's_add_u32 {s(sT)}, {s(sT)}, {WLDS}'); e(f'v_add_u32 {v(aW)}, {s(sT)}, {v(aL16)}')
    e('v_bfe_u32 v27, v1, 2, 1'); e('v_lshl_add_u32 v27, v27, 1, v25'); e('v_bfe_u32 v28, v1, 3, 1'); e('v_xor_b32 v28, v28, v26'); e('v_lshl_add_u32 v27, v28, 2, v27')
    e('v_lshl_add_u32 v27, v24, 3, v27'); e('v_lshlrev_b32 v27, 4, v27'); e(f'v_mul_u32_u24 v28, {2*RSTR}, v26')
    e(f's_mul_i32 {s(sT)}, {s(sWv)}, 1536'); e(f's_add_u32 {s(sT)}, {s(sT)}, {REG}'); e(f'v_add3_u32 {v(aHW)}, v27, v28, {s(sT)}')
    e(f's_lshr_b32 {s(sT+2)}, {s(sWv)}, 1')
    e('v_bfe_u32 v27, v1, 2, 1'); e(f'v_xor_b32 v27, {s(sT+2)}, v27'); e('v_lshl_add_u32 v27, v27, 1, v26'); e('v_bfe_u32 v28, v1, 3, 2'); e('v_lshl_add_u32 v27, v27, 2, v28')
    e(f's_lshl_b32 {s(sT)}, {s(sT+2)}, 2'); e(f's_add_u32 {s(sT+2)}, {s(sT)}, {s(sT+3)}')
    e(f'v_mul_u32_u24 v28, {2*RS}, v25'); e('v_lshl_add_u32 v28, v27, 2, v28'); e('v_mul_u32_u24 v29, 336, v23')
    e(f's_mul_i32 {s(sT)}, {s(sT+2)}, {RS}'); e(f's_add_u32 {s(sT)}, {s(sT)}, {RBASE+B0+2*RS+8}'); e(f'v_add3_u32 {v(aX)}, v28, v29, {s(sT)}')
    e('v_lshl_add_u32 v28, v25, 10, v27'); e('v_mul_u32_u24 v28, 192, v28'); e(f'v_lshl_add_u32 {v(vST)}, v23, 4, v28')
    e(f's_add_u32 {s(sT)}, {s(sT+2)}, {s(sY0)}'); e(f's_sub_u32 {s(sT)}, {s(sT)}, 8'); e(f's_lshl_b32 {s(sT)}, {s(sT)}, 9'); e(f's_add_u32 {s(sT)}, {s(sT)}, {s(sX0)}'); e(f's_mul_i32 {s(sSt)}, {s(sT)}, 192')
    e('v_mul_u32_u24 v27, 43, v1'); e('v_lshrrev_b32 v27, 9, v27'); e('v_mul_u32_u24 v28, 12, v27'); e('v_sub_u32 v28, v1, v28')
    e('v_mul_u32_u24 v28, 336, v28'); e('v_lshl_add_u32 v28, v27, 2, v28'); e(f'v_add_u32 v28, {RBASE}, v28'); e('v_cmp_lt_u32 vcc, 59, v1'); e(f'v_cndmask_b32 {v(aRW)}, v28, v30, vcc')
    def nib(gA): return sum((4 if (2 * gA + (i & 1)) in cfg.CP else 8) << (4 * i) for i in range(4))
    assert all(((p + 4) in cfg.CP) == (p in cfg.CP) for p in range(4))
    e(f'v_mov_b32 v27, {hex(nib(0) | 0x44440000)}'); e(f'v_mov_b32 v28, {hex(nib(1) | 0x44440000)}'); e('v_cmp_eq_u32 vcc, 1, v23'); e('v_cndmask_b32 v27, v27, v28, vcc')
    e('v_mul_u32_u24 v28, 0xaaaa, v26'); e(f'v_lshl_add_u32 {v(IDX)}, v28, 16, v27')
    e('v_lshlrev_b32 v27, 4, v25'); e('v_mov_b32 v28, 0x3f80'); e('v_lshlrev_b32 v27, v27, v28'); e('v_cmp_eq_u32 vcc, v22, v23'); e('v_cndmask_b32 v27, 0, v27, vcc')
    e('v_bfe_u32 v28, v1, 2, 1'); e('v_bfe_u32 v29, v1, 3, 1'); e('v_lshl_add_u32 v28, v28, 1, v29')
    for i in range(4): e(f'v_cmp_eq_u32 vcc, {i}, v28'); e(f'v_cndmask_b32 {v(ID+i)}, 0, v27, vcc')
    e(f'v_mov_b32 {v(ZZ)}, 0'); e(f'v_mov_b32 {v(ZZ+1)}, 0')
    e('v_lshlrev_b32 v32, 6, v21'); e('v_lshl_add_u32 v32, v22, 5, v32'); e('v_lshl_add_u32 v32, v20, 3, v32'); e('v_mul_u32_u24 v27, 6144, v23')
    e(f's_mul_i32 {s(sT)}, {s(sT+3)}, 1536'); e(f's_add_u32 {s(sT)}, {s(sT)}, {W1S}'); e(f'v_add3_u32 v32, v32, v27, {s(sT)}'); e('v_add_u32 v33, 36864, v32')
    e('v_lshl_add_u32 v27, v23, 3, v21'); e('v_mul_u32_u24 v27, 192, v27'); e('v_lshl_add_u32 v27, v22, 5, v27'); e('v_lshl_add_u32 v27, v25, 4, v27'); e('v_lshl_add_u32 v27, v26, 3, v27')
    e(f's_cmp_eq_u32 {s(sT+3)}, 1'); e(f's_mov_b32 {s(sT+1)}, {W2S[2]}'); e(f's_cselect_b32 {s(sT)}, {s(sT+1)}, {W2S[0]}'); e(f'v_add_u32 v34, {s(sT)}, v27')
    e(f's_mov_b32 {s(sT+1)}, {W2S[3]}'); e(f's_cselect_b32 {s(sT)}, {s(sT+1)}, {W2S[1]}'); e(f'v_add_u32 v35, {s(sT)}, v27')
    e('s_mov_b32 s60, 0xffff0000')
    for c in range(2):
        for j in range(5): e(f'v_lshlrev_b32 v{36+j}, 16, v{10+j}' if c == 0 else f'v_and_b32 v{36+j}, s60, v{10+j}')
        for j in range(3):
            e(f'v_lshlrev_b32 v41, 16, v{15+j}' if c == 0 else f'v_and_b32 v41, s60, v{15+j}'); e(f'v_add_f32 v{37+j}, v{37+j}, v41')
        q = 48 + 16 * c
        e(f'v_cvt_pk_bf16_f32 v{q}, v36, v37'); e(f'v_cvt_pk_bf16_f32 v{q+1}, v38, v39'); e(f'v_cvt_pk_bf16_f32 v{q+2}, v40, 0'); e(f'v_mov_b32 v{q+3}, 0')
        e(f'v_cvt_pk_bf16_f32 v{q+4}, 0, v36'); e(f'v_cvt_pk_bf16_f32 v{q+5}, v37, v38'); e(f'v_cvt_pk_bf16_f32 v{q+6}, v39, v40'); e(f'v_mov_b32 v{q+7}, 0')
        e(f'v_mov_b32 v{q+8}, 0'); e(f'v_mov_b32 v{q+12}, 0')
        for j in range(3): e(f'v_mov_b32 v{q+9+j}, v{q+j}'); e(f'v_mov_b32 v{q+13+j}, v{q+4+j}')
    e('v_mul_u32_u24 v42, 640, v4'); e('v_lshl_add_u32 v42, v3, 7, v42'); e(f'v_add_u32 v42, {ATAB}, v42'); e('v_cmp_lt_u32 vcc, 4, v3'); e('v_cndmask_b32 v42, v42, v30, vcc')
    e('v_lshrrev_b32 v27, 1, v1'); e('v_lshlrev_b32 v27, 6, v27'); e('v_lshl_add_u32 v27, v25, 3, v27')
    e(f's_mul_i32 {s(sT)}, {s(sWv)}, 18432'); e(f's_add_u32 {s(sT)}, {s(sT)}, {W1S}'); e(f'v_add_u32 v27, {s(sT)}, v27')
    e(f's_mul_i32 {s(sT)}, {s(sKi)}, 0x00800080'); e(f'v_mov_b32 v28, {s(sT)}')
    adds = []
    for p in cfg.CP:
        for i in range(9):
            x = I(f'ds_add_u32 v27, v28 offset:{2048*i + 16*(p>>1) + 4*(p&1)}', done=w1d); P.append(x); adds.append(x)
    P.append(I('s_barrier', done=adds + w1d))
    LT = 80
    def dst(f, jj): return v(LT + 4 * LFR.index(f) + 2 * jj, 2) if f in LFR else ar(areg(f) + 2 * jj, 2)
    trs = []
    for b in range(6):
        for k in range(6):
            for jj in range(2):
                x = I(f'ds_read_b64_tr_b16 {dst(("g1",b,k),jj)}, v{32 + k//3} offset:{(4*(k%3)+jj)*3072 + 256*b}'); P.append(x); trs.append(x)
    P.append(I('s_barrier', done=w2d))
    for b in range(6):
        for t in range(2):
            for ob in range(3):
                for jj in range(2):
                    x = I(f'ds_read_b64_tr_b16 {dst(("g2",b,t,ob),jj)}, v{34 + b//3} offset:{(32*(b%3)+16*t+4*jj)*192 + 64*ob}'); P.append(x); trs.append(x)
    P.append(I('s_barrier', done=trs))
    wr = []
    for i in range(8):
        x = I(f'ds_write_b128 v42, {v(48+4*i,4)} offset:{16*i}'); P.append(x); wr.append(x)
    e(f's_mul_i32 {s(sRW)}, {s(sWv)}, {3*RS}'); e(f's_add_u32 {s(sRW)}, {s(sRW)}, {B0}')
    rl, rw = ring_write(0, 1, D, 3, 27); P.extend(rl); wr += rw
    for i in range(8):
        x = I(f'ds_write_b128 {v(aW)}, {v(LT+4*i,4)} offset:{1024*i}'); P.append(x); wr.append(x)
    e(f's_mul_i32 {s(sRW)}, {s(sWv)}, {2*RS}'); e(f's_add_u32 {s(sRW)}, {s(sRW)}, {B0+12*RS}'); e(f's_sub_u32 {s(sT)}, {s(sRW)}, {WP}'); e(f's_min_u32 {s(sRW)}, {s(sRW)}, {s(sT)}')
    bA = I('s_barrier', done=wr); P.append(bA)
    Q = []
    cv, cvr = conv(0.0, 1.2, [(0, 12), (18, 30), (36, 48), (54, 66)]); Q += cv
    sw = stats_write(1.9); Q.append(sw)
    bs = I('s_barrier', 2.0, done=[sw] + cvr); Q.append(bs)
    for q in range(3): Q += adv_ring_v(aB + q, TMP, 1.91)
    rl, rw = ring_write(2.03, 2.3, STG, 2, TMP, after=[bs]);
    nl, nr, hw = normalize(2.01, 3.0, CB, bs, bs); Q += nl; Q += rl
    Q += adv_ring_s(2.5)
    Q += load_group(2.6)
    b0 = I('s_barrier', 3.1, done=hw + rw); Q.append(b0)
    Q += hread(aSend, 3.2, after=[b0])
    P += schedule(Q, LDSLAT=128, look=0.5, maxds=8)
    e(f's_mov_b32 {s(sCnt)}, {cfg.nsteps}')
    e('s_waitcnt lgkmcnt(0)')
    return P

def emit(seq): return '\n'.join((x.text if x.kind == 'label' else '    ' + x.text) for x in seq) + '\n'

def raw(t):
    x = I('s_nop 0'); x.text = t; x.kind = 'salu'; return x
def build(out):
    pro = fix_waits(prologue(), LSAFE=10**9)
    body = schedule(loop_body(), LDSLAT=cfg.LDSLAT, look=cfg.look, maxds=cfg.maxds, verbose=True)
    body += [I(f's_sub_u32 {s(sCnt)}, {s(sCnt)}, 1'), I(f's_cmp_lg_u32 {s(sCnt)}, 0'), I('s_cbranch_scc1 L_loop')]
    body = fix_waits(body, loop=True, LSAFE=cfg.LSAFE)
    dr = schedule(drain(), LDSLAT=150, look=0.6, maxds=4)
    dr = fix_waits(body + dr, LSAFE=cfg.LSAFE)[len(body):]
    if cfg.dbg:
        nst = [0]
        def stamp():
            k = 72 + nst[0]; nst[0] += 1
            return [raw('s_memtime s[62:63]'), raw('s_waitcnt lgkmcnt(0)'), raw(f's_mov_b32 s{k}, s62')]
        if cfg.dbg == 'pro':
            p2 = []
            for i, x in enumerate(pro):
                if i == 2: p2 += stamp()
                if x.text == 'L_lut:' or x.kind == 'bar': p2 += stamp()
                p2.append(x)
                if x.text.endswith('L_lut') or x.kind == 'bar': p2 += stamp()
            pro = p2 + stamp()
            dr = stamp() + dr + stamp() + [raw('s_waitcnt vmcnt(0)')] + stamp()
        elif cfg.dbg == 'iter':
            pro = pro[:2] + [raw('s_memtime s[62:63]'), raw('s_memrealtime s[64:65]'), raw('s_waitcnt lgkmcnt(0)'), raw('s_mov_b32 s72, s62'), raw('s_mov_b32 s84, s64')] + pro[2:]
            body = [raw('s_memtime s[62:63]'), raw('s_waitcnt lgkmcnt(0)')] + [raw(f's_mov_b32 s{73+i}, s{74+i}') for i in range(7)] + [raw('s_mov_b32 s80, s62')] + body
            dr = [raw('s_memtime s[62:63]'), raw('s_waitcnt lgkmcnt(0)'), raw('s_mov_b32 s81, s62')] + dr + [raw('s_waitcnt vmcnt(0)'), raw('s_memtime s[62:63]'), raw('s_memrealtime s[64:65]'), raw('s_waitcnt lgkmcnt(0)'), raw('s_mov_b32 s82, s62'), raw('s_mov_b32 s85, s64'), raw('s_mov_b32 s83, s62')]
            nst[0] = 14
        elif cfg.dbg == 'slot':
            b2 = []; k = 0
            for x in body:
                if x.kind == 'mfma' and x.text.endswith(', 0') and '32x32x16' in x.text:
                    b2.append(raw(f's_memtime s[{72+2*k}:{73+2*k}]')); k += 1
                b2.append(x)
            body = b2
            dr = [raw('s_memtime s[62:63]'), raw('s_waitcnt lgkmcnt(0)')] + [raw(f's_mov_b32 s{72+i}, s{72+2*i}') for i in range(1, 12)] + [raw('s_mov_b32 s84, s62')] + dr
            nst[0] = 13
        tail = [raw('s_waitcnt vmcnt(0) lgkmcnt(0)'), raw('s_lshl_b32 s62, s2, 2'), raw(f's_add_u32 s62, s62, {s(sWv)}'), raw('s_lshl_b32 s62, s62, 7'), raw('v_mov_b32 v1, s62')]
        for i in range(nst[0]): tail += [raw(f'v_mov_b32 v2, s{72+i}'), raw(f'global_store_dword v1, v2, s[70:71] offset:{4*i}')]
        dr = dr + tail
    from collections import Counter
    print('prologue', len(pro), estimate(pro), 'body', len(body), estimate(body), Counter(x.kind for x in body), 'drain', len(dr), estimate(dr))
    k = NAME + '_kernel'
    txt = f'; @launch grid=(256,1,1) block=(256,1,1) lds={LDSSZ}\n.amdgcn_target "amdgcn-amd-amdhsa--gfx950"\n.text\n.globl {k}\n.p2align 8\n.type {k},@function\n{k}:\n'
    txt += emit(pro) + '.p2align 6\nL_loop:\n' + emit(body) + emit(dr) + 'L_end:\n    s_endpgm\n'
    txt += f""".section .rodata,"a"
.p2align 6
.amdhsa_kernel {k}
  .amdhsa_next_free_vgpr 512
  .amdhsa_next_free_sgpr 102
  .amdhsa_accum_offset 256
  .amdhsa_group_segment_fixed_size 0
  .amdhsa_kernarg_size 64
  .amdhsa_user_sgpr_count 2
  .amdhsa_user_sgpr_kernarg_segment_ptr 1
  .amdhsa_system_sgpr_workgroup_id_x 1
  .amdhsa_float_denorm_mode_32 3
.end_amdhsa_kernel
"""
    open(out, 'w').write(txt)

if __name__ == '__main__':
    for a in sys.argv[2:]:
        kk, vv = a.split('=')
        setattr(cfg, kk, eval(vv))
    build(sys.argv[1])
```
